```python
import torch

def _softmax(x, axis=-1):
    return torch.softmax(x, dim=axis)

def _gelu(x):
    return torch.nn.functional.gelu(x, approximate='tanh')

def _silu(x):
    return torch.nn.functional.silu(x)

def _sigmoid(x):
    return torch.sigmoid(x)

def _layernorm(x, axis=-1, eps=1e-05):
    m = x.mean(dim=axis, keepdim=True)
    v = x.var(dim=axis, keepdim=True, unbiased=False)
    return (x - m) / torch.sqrt(v + eps)

def _scatter_add(tgt, idx, src, axis=0):
    return tgt.clone().index_add_(axis, idx, src)

def _segment_sum(src, seg, n):
    out = torch.zeros((n,) + src.shape[1:], dtype=src.dtype)
    return out.index_add_(0, seg, src)

def _pad(x, pw):
    flat = tuple((v for pair in reversed(pw) for v in pair))
    return torch.nn.functional.pad(x, flat)
kernel_name = 'adaLN_cond__softmax_full_mha__mixer_gmlp__prompt'

def setup_inputs():

    _w = lambda a: (lambda t: t.to(torch.bfloat16) if t.is_floating_point() else t)(torch.as_tensor(a))

    def _A_setup():
        B, S, D = (1, 2048, 576)
        return {'x': _w((lambda *s: torch.randn(*s, dtype=torch.bfloat16) * 0.05)(B, S, D)), 'wqkv': _w((lambda *s: torch.randn(*s, dtype=torch.bfloat16) * 0.05)(D, 3 * D)), 'wo': _w((lambda *s: torch.randn(*s, dtype=torch.bfloat16) * 0.05)(D, D))}
    _A_in = _A_setup()

    def _B_setup():
        B, S, D, F = (1, 2048, 576, 4608)
        Fh = F // 2
        return {'x': _w((lambda *s: torch.randn(*s, dtype=torch.bfloat16) * 0.05)(B, S, D)), 'w_in': _w((lambda *s: torch.randn(*s, dtype=torch.bfloat16) * 0.4)(D, 2 * Fh)), 'w_sp': _w(0.01 * (lambda *s: torch.randn(*s, dtype=torch.bfloat16) * 0.4)(S, S)), 'b_sp': _w(1.0 + 0.01 * (lambda *s: torch.randn(*s, dtype=torch.bfloat16) * 0.05)(S)), 'w_out': _w((lambda *s: torch.randn(*s, dtype=torch.bfloat16) * 0.05)(Fh, D))}
    _B_in = _B_setup()
    return {'A_x': _A_in['x'], 'A_wqkv': _A_in['wqkv'], 'A_wo': _A_in['wo'], 'B_x': _B_in['x'], 'B_w_in': _B_in['w_in'], 'B_w_sp': _B_in['w_sp'], 'B_b_sp': _B_in['b_sp'], 'B_w_out': _B_in['w_out'], 'c': _w((lambda *s: torch.randn(*s, dtype=torch.bfloat16) * 0.1)(1, 576) * 8.0), 'w_mod': _w((lambda *s: torch.randn(*s, dtype=torch.bfloat16) * 0.1)(576, 6 * 576) * 576 ** (-0.5) * 8.0)}

def reference(A_x, A_wqkv, A_wo, B_x, B_w_in, B_w_sp, B_b_sp, B_w_out, c, w_mod):

    def _A_ref(x, wqkv, wo):
        B, S, D = x.shape
        H = 32
        Dh = D // H
        qkv = (lambda x, *d: x.permute(*d))((x @ wqkv).reshape(B, S, 3, H, Dh), 2, 0, 3, 1, 4)
        q, k, v = (qkv[0], qkv[1], qkv[2])
        scale = Dh ** (-0.5)
        scores = torch.einsum('bhqd,bhkd->bhqk', q, k) * scale
        p = _softmax(scores, axis=-1)
        o = torch.einsum('bhqk,bhkd->bhqd', p, v)
        return (lambda x, *d: x.permute(*d))(o, 0, 2, 1, 3).reshape(B, S, D) @ wo

    def _B_ref(x, w_in, w_sp, b_sp, w_out):
        B, S, D = x.shape
        F = w_in.shape[-1]
        Fh = F // 2
        z = _gelu(torch.einsum('bsd,df->bsf', x, w_in))
        z1 = z[..., :Fh].clone()
        z2 = _layernorm(z[..., Fh:], axis=-1)
        g = torch.einsum('ts,bsf->btf', w_sp, z2) + b_sp[None, :, None]
        return torch.einsum('bsf,fd->bsd', z1 * g, w_out)
    x = A_x
    mod = (_silu(c) @ w_mod).reshape(c.shape[0], 6, 1, -1)
    sa, ca, ga, sb, cb, gb = (mod[:, 0].clone(), mod[:, 1].clone(), mod[:, 2].clone(), mod[:, 3].clone(), mod[:, 4].clone(), mod[:, 5].clone())
    h = _layernorm(x, axis=-1) * (1 + ca) + sa
    x = x + ga * _A_ref(h, A_wqkv, A_wo)
    h = _layernorm(x, axis=-1) * (1 + cb) + sb
    x = x + gb * _B_ref(h, B_w_in, B_w_sp, B_b_sp, B_w_out)
    return x
```

```python
S, D, H, DH, F, FH = 2048, 576, 32, 18, 4608, 2304

KA = dict(x=0, wqkv=8, wo=16, bx=24, w_in=32, w_sp=40, b_sp=48, w_out=56, c=64, w_mod=72, out=80, dbg=88, ws=96)

def _layout():
    o = {}
    p = 0
    def add(n, sz, al=4096):
        nonlocal p
        p = (p + al - 1) // al * al
        o[n] = p
        p += sz
    add('MOD', 3456 * 4)
    add('MODB', 3456 * 2)
    add('V2', F * 4)
    add('ST2', 8 * S * 8)
    add('XCH', 16 * 16 * 128 * 8)
    add('H1', S * D * 2)
    add('W1T', 16 * 112 * D * 2)
    add('QM', H * S * 32)
    add('KM', H * S * 32)
    add('QT', H * S * 4)
    add('KT', H * S * 4)
    add('VT', H * 64 * 4 * 304)
    add('O', S * D * 2)
    add('WOT', D * D * 2 + 16 * D * 2)
    add('X1', S * D * 2)
    add('W2', F * D * 2)
    add('Z2T', FH * S * 2)
    add('Z1', S * FH * 2)
    add('Y', S * FH * 2)
    add('WOUTT', D * FH * 2 + 16 * FH * 2)
    add('DIAG', 1 << 20)
    o['END'] = p
    return o
WS = _layout()
DBG = {}


class Asm:
    def __init__(self, name):
        self.name = name
        self.l = []
        self.n = 0

    def __call__(self, s=""):
        for line in s.split("\n"):
            line = line.strip()
            if not line:
                continue
            if line.endswith(":") or line.startswith("."):
                self.l.append(line)
            else:
                self.l.append("    " + line)

    def lab(self, base):
        self.n += 1
        return f"L_{self.name}_{base}{self.n}"

    def text(self):
        return "\n".join(self.l) + "\n"


def v(a, n=1):
    return f"v{a}" if n == 1 else f"v[{a}:{a+n-1}]"


def s(a, n=1):
    return f"s{a}" if n == 1 else f"s[{a}:{a+n-1}]"


def srd(k, d, lo, off, size, extra=None):
    if extra is not None:
        k(f"s_add_u32 s{d}, s{lo}, s{extra}\ns_addc_u32 s{d+1}, s{lo+1}, 0")
        if off:
            k(f"s_add_u32 s{d}, s{d}, {off}\ns_addc_u32 s{d+1}, s{d+1}, 0")
    elif off:
        k(f"s_add_u32 s{d}, s{lo}, {off}\ns_addc_u32 s{d+1}, s{lo+1}, 0")
    else:
        k(f"s_mov_b32 s{d}, s{lo}\ns_mov_b32 s{d+1}, s{lo+1}")
    k(f"s_mov_b32 s{d+2}, {size}\ns_mov_b32 s{d+3}, 0x20000")


def header(name):
    return f""".globl {name}
.p2align 8
.type {name},@function
{name}:
"""


def descriptor(name, vgpr, sgpr=96):
    vg = (vgpr + 7) // 8 * 8
    return f""".p2align 6
.amdhsa_kernel {name}
  .amdhsa_next_free_vgpr {vg}
  .amdhsa_next_free_sgpr {sgpr}
  .amdhsa_accum_offset {vg}
  .amdhsa_group_segment_fixed_size 0
  .amdhsa_kernarg_size 104
  .amdhsa_user_sgpr_count 2
  .amdhsa_user_sgpr_kernarg_segment_ptr 1
  .amdhsa_system_sgpr_workgroup_id_x 1
.end_amdhsa_kernel
"""


def assemble_file(kernels, banner=""):
    out = banner
    for kk in kernels:
        out += f"; @launch kernel={kk['name']} grid=({kk['grid']},1,1) block=({kk['block']},1,1) lds={kk['lds']}\n"
    out += '.amdgcn_target "amdgcn-amd-amdhsa--gfx950"\n.text\n'
    seen = []
    for kk in kernels:
        if kk['name'] in seen:
            continue
        seen.append(kk['name'])
        out += header(kk['name']) + kk['text']
    out += '.section .rodata,"a"\n'
    seen = []
    for kk in kernels:
        if kk['name'] in seen:
            continue
        seen.append(kk['name'])
        out += descriptor(kk['name'], kk['vgpr'])
    return out


class Diag:
    def __init__(self, k, on, slot):
        self.k, self.on, self.slot, self.i = k, on, slot, 0

    def stamp(self):
        if not self.on:
            return
        assert self.i < 7
        self.k(f"s_memtime s[{80+2*self.i}:{81+2*self.i}]")
        self.i += 1

    def dump(self, ws_lo, wave_sreg, vtmp):
        if not self.on:
            return
        k = self.k
        k("s_memrealtime s[94:95]\ns_waitcnt lgkmcnt(0)")
        srd(k, 76, ws_lo, WS['DIAG'] + self.slot * 65536 * 2, 0x20000)
        k(f"s_lshl_b32 s75, s2, 3\ns_add_u32 s75, s75, s{wave_sreg}\ns_lshl_b32 s75, s75, 5")
        for i in range(8):
            src = f"s{80+2*i}" if (i < self.i or i == 7) else "0"
            k(f"v_mov_b32 v{vtmp+i}, {src}")
        k(f"v_mov_b32 v{vtmp+8}, s75")
        k(f"buffer_store_dwordx4 {v(vtmp,4)}, v{vtmp+8}, s[76:79], 0 offen")
        k(f"buffer_store_dwordx4 {v(vtmp+4,4)}, v{vtmp+8}, s[76:79], 0 offen offset:16")
        if DBG.get('steps'):
            srd(k, 76, ws_lo, WS['DIAG'] + 7 * 65536 * 2, 0x20000)
            k(f"s_lshl_b32 s75, s2, 8\nv_lshlrev_b32 v{vtmp+8}, 2, v1\nv_add_u32 v{vtmp+8}, s75, v{vtmp+8}\nbuffer_store_dword v255, v{vtmp+8}, s[76:79], 0 offen")


class Loader:
    def __init__(self, k, regions, nsteps, NS, w_s, vbase=2, s0=40, lead=None, flags="", pro=None):
        self.k, self.regions, self.nsteps, self.NS = k, regions, nsteps, NS
        self.w_s, self.vbase, self.s0, self.lead, self.flags = w_s, vbase, s0, lead, flags
        self.per = sum(r['n'] // 4 for r in regions)
        self.pro = pro or NS - 1

    def setup_v(self):
        k, s0, w_s = self.k, self.s0, self.w_s
        self.sN, self.sT, self.sCnt = s0, s0 + 1, s0 + 2
        self.sM, self.sK, self.sX = s0 + 3, s0 + 6, s0 + 9
        sT = self.sT
        vn = self.vbase
        cache = {}
        plan = []
        for ri, r in enumerate(self.regions):
            q, rem = divmod(r['n'], 4)
            r['q'] = q
            mode = r['mode']
            pitch = r.get('pitch', 0)
            r['kst'] = {'row': 128, 'fb': 2048, 'img': r['n'] * 1024}[mode]
            if mode == 'row':
                if ('row', pitch) not in cache:
                    ve, vo = vn, vn + 1; vn += 2
                    k(f"""s_mov_b32 s{sT}, {pitch}
                    v_lshrrev_b32 v{ve}, 3, v1
                    v_lshrrev_b32 v{vo}, 4, v1
                    v_xor_b32 v{vo}, v{vo}, v1
                    v_and_b32 v{vo}, 7, v{vo}
                    v_lshlrev_b32 v{vo}, 4, v{vo}
                    v_mad_u32_u24 v{ve}, v{ve}, s{sT}, v{vo}
                    v_xor_b32 v{vo}, 64, v{ve}""")
                    cache[('row', pitch)] = (ve, vo)
                b = cache[('row', pitch)]
                assert q % 2 == 0 and rem == 0
                goff = lambda j: j * 8 * pitch
                r['wst'] = q * 8 * pitch
                base = lambda j: b[j & 1]
            else:
                if 'lin' not in cache:
                    k(f"v_lshlrev_b32 v{vn}, 4, v1"); cache['lin'] = vn; vn += 1
                b = cache['lin']
                if mode == 'img':
                    goff = lambda j: j * 1024
                    r['wst'] = q * 1024
                else:
                    assert q % 2 == 0 and rem in (0, 2)
                    goff = lambda j: (j >> 1) * pitch + (j & 1) * 1024
                    r['wst'] = (q >> 1) * pitch
                base = lambda j: b
            for j in range(q):
                imm = (j % 4) * 1024
                add = goff(j) - imm
                key = (base(j), add)
                if key not in cache:
                    if add == 0:
                        cache[key] = base(j)
                    else:
                        k(f"v_add_u32 v{vn}, {add}, v{base(j)}")
                        cache[key] = vn; vn += 1
                plan.append((ri, cache[key], (j // 4) * 4096 if j % 4 == 0 else None, imm, 0))
            if rem:
                sx = self.sX + ri
                k(f"""s_mul_i32 s{sT}, s{w_s}, {(1024 - r['wst']) & 0xffffffff}
                s_add_u32 s{sT}, s{sT}, {4*r['wst']}
                v_add_u32 v{vn}, s{sT}, v{base(0)}
                s_lshl_b32 s{sx}, s{w_s}, 10
                s_add_u32 s{sx}, s{sx}, {r['lds'] + 4096*q}""")
                plan.append((ri, vn, 'x', 0, rem))
                vn += 1
            k(f"s_mul_i32 s{self.sM+ri}, s{w_s}, {q*1024}")
            if r['lds']:
                k(f"s_add_u32 s{self.sM+ri}, s{self.sM+ri}, {r['lds']}")
        self.plan = plan
        if self.lead:
            L, sp, nown, win = self.lead
            a, b_ = vn, vn + 1
            k(f"""v_subrev_u32 v{a}, s{sp}, v1
            v_add_u32 v{a}, {L}, v{a}
            v_and_b32 v{a}, {win-1}, v{a}
            v_cmp_gt_u32 vcc, {L+nown}, v{a}
            v_mov_b32 v{b_}, 0
            s_nop 0
            v_cndmask_b32 v{b_}, v{b_}, {-nown}, vcc
            v_cmp_gt_u32 vcc, {nown}, v{a}
            v_sub_u32 v{a}, v1, v{a}
            s_nop 0
            v_cndmask_b32 v{b_}, v{b_}, {L}, vcc
            v_cmp_ge_u32 vcc, {self.nsteps-L-nown}, v{a}
            s_nop 1
            v_cndmask_b32 v{b_}, 0, v{b_}, vcc
            v_add_u32 v{b_}, v{b_}, v1""")
            self.tab = vn + 2
            for ri, r in enumerate(self.regions):
                k(f"v_mul_u32_u24 v{self.tab+ri}, {r['kst']}, v{b_}")
            vn += 2 + len(self.regions)
            k(f"s_mov_b32 s{self.sN}, 1")
        for ri, r in enumerate(self.regions):
            k(f"s_mov_b32 s{self.sK+ri}, 0")
        self.vnext = vn

    def setup_srd(self):
        k, sT = self.k, self.sT
        for r in self.regions:
            d = r['srd']
            k(f"s_mul_i32 s{sT}, s{self.w_s}, {r['wst']}\ns_sub_u32 s{d+2}, {r['size']}, s{sT}")
            if r.get('soff') is not None:
                k(f"s_add_u32 s{sT}, s{sT}, s{r['soff']}")
            if r.get('off'):
                k(f"s_add_u32 s{sT}, s{sT}, {r['off']}")
            k(f"s_add_u32 s{d}, s{r['ptr']}, s{sT}\ns_addc_u32 s{d+1}, s{r['ptr']+1}, 0\ns_mov_b32 s{d+3}, 0x20000")
        if self.lead:
            for ri, r in enumerate(self.regions):
                k(f"v_readlane_b32 s{self.sK+ri}, v{self.tab+ri}, 0")
            k("s_nop 3")

    def issue(self, slot, pad=False):
        k, sM = self.k, self.sM
        for (ri, vreg, m0a, imm, rem) in self.plan:
            r = self.regions[ri]
            sr = r['srd']
            if m0a == 'x':
                lab = k.lab("g")
                k(f"s_add_u32 m0, s{self.sX+ri}, {slot*r['stride']}\ns_cmp_lt_u32 s{self.w_s}, {rem}\ns_cbranch_scc0 {lab}")
            elif m0a is not None:
                k(f"s_add_u32 m0, s{sM+ri}, {m0a + slot*r['stride']}\ns_nop 0")
            if not DBG.get('nodma'):
                k(f"buffer_load_dwordx4 v{vreg}, s[{sr}:{sr+3}], s{self.sK+ri} offen" + (f" offset:{imm}" if imm else "") + f" {self.flags} lds")
            if rem:
                k(f"{lab}:")
        for ri, r in enumerate(self.regions):
            if self.lead:
                k(f"v_readlane_b32 s{self.sK+ri}, v{self.tab+ri}, s{self.sN}")
            else:
                k(f"s_add_u32 s{self.sK+ri}, s{self.sK+ri}, {r['kst']}")
        if self.lead:
            k(f"s_add_u32 s{self.sN}, s{self.sN}, 1")
            k("s_nop 2" if pad else "s_nop 0")

    def run(self, tail=None, dg=None):
        k, per, sCnt, pro, NS = self.k, self.per, self.sCnt, self.pro, self.NS
        for i in range(pro):
            self.issue(i % NS, pad=True)
        if dg:
            dg.stamp()
            k(f"s_waitcnt vmcnt({per*(pro-1)})")
            dg.stamp()
        n = self.nsteps - pro
        nit, rem = divmod(n, NS)
        if nit:
            lp = k.lab("ld")
            k(f"s_mov_b32 s{sCnt}, {nit}\n{lp}:")
            for i in range(NS):
                k(f"s_waitcnt vmcnt({per*(pro-1)})\ns_barrier")
                self.issue((pro + i) % NS)
            k(f"s_sub_u32 s{sCnt}, s{sCnt}, 1\ns_cmp_lg_u32 s{sCnt}, 0\ns_cbranch_scc1 {lp}")
        for i in range(rem):
            k(f"s_waitcnt vmcnt({per*(pro-1)})\ns_barrier")
            self.issue((pro + i) % NS)
        extra = 0
        for i in range(pro):
            k(f"s_waitcnt vmcnt({per*(pro-1-i)+extra})\ns_barrier")
            if tail:
                extra += tail(i) or 0


def consumer_loop(k, reads, mfmas, nsteps, NS, setA, setB, pre_last=None, mf_lead=1):
    def rd(ri, rd_set, kk, slot):
        a0, a1, imm, st = reads[ri]
        if a1 is None:
            k(f"ds_read_b128 {v(rd_set+4*ri,4)}, v{a0} offset:{imm+slot*st+kk*1024}")
        else:
            k(f"ds_read_b128 {v(rd_set+4*ri,4)}, v{a1 if kk else a0} offset:{imm+slot*st}")

    def burst(rd_set, kk, slot, mf_set):
        ri = 0
        for i, (acc, fa, fb) in enumerate(mfmas):
            if not DBG.get('nomfma'):
                k(f"v_mfma_f32_16x16x32_bf16 {v(acc,4)}, {v(mf_set+4*fa,4)}, {v(mf_set+4*fb,4)}, {v(acc,4)}")
            if DBG.get('noread'): ri = len(reads)
            if rd_set is not None and i >= mf_lead - 1 and ri < len(reads):
                rd(ri, rd_set, kk, slot)
                ri += 1
        while rd_set is not None and ri < len(reads):
            rd(ri, rd_set, kk, slot)
            ri += 1

    def step(slot):
        k("s_waitcnt lgkmcnt(0)\ns_barrier")
        if DBG.get('steps'):
            k("s_memtime s[70:71]\ns_waitcnt lgkmcnt(0)\ns_nop 0\nv_writelane_b32 v207, s70, m0\ns_add_u32 m0, m0, 1")
        burst(setA, 0, slot, setB)
        k("s_waitcnt lgkmcnt(0)")
        burst(setB, 1, slot, setA)

    lp = k.lab("mm")
    nit = nsteps // NS
    if DBG.get('steps'): k("s_mov_b32 m0, 0\nv_mov_b32 v207, 0")
    k(f"s_mov_b32 s39, {nit}\n.p2align 4\n{lp}:")
    for slot in range(NS):
        step(slot)
    if pre_last:
        sk = k.lab("pl")
        k(f"s_cmp_eq_u32 s39, 2\ns_cbranch_scc0 {sk}")
        pre_last()
        k(f"{sk}:")
    k(f"s_sub_u32 s39, s39, 1\ns_cmp_lg_u32 s39, 0\ns_cbranch_scc1 {lp}")
    for slot in range(nsteps % NS):
        step(slot)
    k("s_waitcnt lgkmcnt(0)")
    burst(None, 0, 0, setB)


def frag_addr(k, vdst0, vdst1, vtmp, off_sreg=None, off_imm=0):
    k(f"v_and_b32 v{vtmp}, 15, v1\nv_lshrrev_b32 v{vtmp+1}, 1, v{vtmp}\nv_lshrrev_b32 v{vdst0}, 4, v1\nv_xor_b32 v{vdst0}, v{vdst0}, v{vtmp+1}")
    k(f"v_lshlrev_b32 v{vdst0}, 4, v{vdst0}\nv_lshl_add_u32 v{vdst0}, v{vtmp}, 7, v{vdst0}")
    k(f"v_xor_b32 v{vdst1}, 64, v{vdst0}")
    if off_sreg is not None:
        k(f"v_add_u32 v{vdst0}, s{off_sreg}, v{vdst0}\nv_add_u32 v{vdst1}, s{off_sreg}, v{vdst1}")
    if off_imm:
        k(f"v_add_u32 v{vdst0}, {off_imm}, v{vdst0}\nv_add_u32 v{vdst1}, {off_imm}, v{vdst1}")


class GemmLoop:
    def __init__(self, k, frags, mfmas, nsteps, NS, bps, upd, strides, bar_pos=1, s0=36):
        self.__dict__.update(k=k, frags=frags, mfmas=mfmas, nsteps=nsteps, NS=NS, bps=bps, upd=upd, strides=strides, bar_pos=bar_pos, s0=s0)
        first = {}
        last = {}
        for i, (a, fa, fb) in enumerate(mfmas):
            for f in (fa, fb):
                first.setdefault(f, i); last[f] = i
        self.first, self.last = first, last
        self.order = sorted(range(len(frags)), key=lambda f: first[f])

    def rd(self, f, par, kk):
        fr = self.frags[f]
        a0, a1 = fr['a']
        if a1 is None:
            a, imm = a0, fr['imm'] + kk * fr.get('kst', 1024)
        else:
            a, imm = (a1 if kk else a0), fr['imm']
        if not DBG.get('noread'):
            self.k(f"ds_read_b128 {v(fr['r'][par],4)}, v{a} offset:{imm}")

    def advance(self):
        k, s0 = self.k, self.s0
        k(f"s_add_u32 s{s0+1}, s{s0+1}, 1\ns_cmp_eq_u32 s{s0+1}, {self.NS}\ns_cselect_b32 s{s0+1}, 0, s{s0+1}")
        for ri, st in enumerate(self.strides):
            k(f"s_cselect_b32 s{s0+2+ri}, s{s0+4+ri}, {st}")
        for (a, ri) in self.upd:
            k(f"v_add_u32 v{a}, s{s0+2+ri}, v{a}")

    def burst(self, b, prev, reads, zero=False):
        k = self.k
        par = b & 1
        newstage = reads and (b + 1) % self.bps == 0
        kk = 0 if self.bps == 1 else (b + 1) & 1
        queue = list(('p', f) for f in prev)
        done = set()
        pend = list(self.order) if reads else []
        issued = []
        for i, (acc, fa, fb) in enumerate(self.mfmas):
            need = [queue.index(('p', f)) for f in (fa, fb) if ('p', f) in queue]
            if need:
                n = len(queue) - 1 - max(need)
                if n <= 15:
                    k(f"s_waitcnt lgkmcnt({n})")
                else:
                    k("s_waitcnt lgkmcnt(15)"); n = 15
                queue = queue[len(queue) - n:] if n else []
            c = "0" if zero else v(acc, 4)
            if not DBG.get('nomfma'):
                k(f"v_mfma_f32_16x16x32_bf16 {v(acc,4)}, {v(self.frags[fa]['r'][par],4)}, {v(self.frags[fb]['r'][par],4)}, {c}")
            if newstage and i == self.bar_pos - 1:
                self.advance()
                k("s_waitcnt lgkmcnt(0)\ns_barrier")
                if DBG.get('steps'):
                    k("s_memtime s[70:71]\ns_waitcnt lgkmcnt(0)\ns_nop 0\nv_writelane_b32 v255, s70, m0\ns_add_u32 m0, m0, 1")
                queue = []
            if pend and (not newstage or i >= self.bar_pos - 1):
                for f in pend:
                    fr = self.frags[f]
                    if fr['r'][0] != fr['r'][1] or self.last[f] <= i:
                        self.rd(f, par ^ 1, kk); pend.remove(f); issued.append(f); queue.append(('n', f))
                        break
        for f in pend:
            self.rd(f, par ^ 1, kk); issued.append(f)
        return issued

    def emit(self):
        k, s0 = self.k, self.s0
        NB = self.nsteps * self.bps
        k(f"s_mov_b32 s{s0+1}, 0")
        for ri, st in enumerate(self.strides):
            k(f"s_mov_b32 s{s0+4+ri}, {(-st*(self.NS-1)) & 0xffffffff}")
        if DBG.get('steps'): k("s_mov_b32 m0, 0\nv_mov_b32 v255, 0")
        k("s_waitcnt lgkmcnt(0)\ns_barrier")
        if DBG.get('steps'):
            k("s_memtime s[70:71]\ns_waitcnt lgkmcnt(0)\ns_nop 0\nv_writelane_b32 v255, s70, m0\ns_add_u32 m0, m0, 1")
        for f in self.order:
            self.rd(f, 0, 0)
        o = self.burst(0, self.order, True, zero=True)
        npair = (NB - 2) // 2
        lp = k.lab("mm")
        k(f"s_mov_b32 s{s0}, {npair}\n.p2align 3\n{lp}:")
        o1 = self.burst(1, o, True)
        o2 = self.burst(2, o1, True)
        assert o2 == o
        k(f"s_sub_u32 s{s0}, s{s0}, 1\ns_cmp_lg_u32 s{s0}, 0\ns_cbranch_scc1 {lp}")
        b = 1 + 2 * npair
        if b < NB - 1:
            o = self.burst(b, o, True); b += 1
        self.burst(b, o, False)
```

```python
from gcore import *
from k4 import fbits, interleave
import math
LOG2E = math.log2(math.e)

def udiv(k, vq, vin, d, maxv):
    sh = 16
    while True:
        m = -(-(1 << sh) // d)
        if all((x*m) >> sh == x//d for x in range(maxv)) and m*maxv < (1 << 32) and m < (1 << 24): break
        sh += 1
    k(f"v_mul_u32_u24 v{vq}, {m}, v{vin}\nv_lshrrev_b32 v{vq}, {sh}, v{vq}")

def sdiv(k, sq, sin, d, maxv):
    sh = 16
    while True:
        m = -(-(1 << sh) // d)
        if all((x*m) >> sh == x//d for x in range(maxv)) and m*maxv < (1 << 32): break
        sh += 1
    k(f"s_mul_i32 s{sq}, s{sin}, {m}\ns_lshr_b32 s{sq}, s{sq}, {sh}")

def k0a(diag=False):
    k = Asm("k0a")
    dg = Diag(k, diag, 0)
    dg.stamp()
    k(f"""s_cmp_ge_u32 s2, 252
    s_cbranch_scc1 L_k0a_end
    s_load_dwordx2 s[6:7], s[0:1], {KA['ws']}
    v_lshrrev_b32 v2, 6, v0
    v_and_b32 v1, 63, v0
    v_readfirstlane_b32 s20, v2
    s_cmp_lt_u32 s2, 108
    s_cbranch_scc0 L_k0a_tr
    s_load_dwordx4 s[8:11], s[0:1], {KA['c']}
    v_lshrrev_b32 v3, 2, v0
    v_and_b32 v4, 3, v0
    v_mul_u32_u24 v5, 6912, v3
    v_lshl_add_u32 v5, v4, 4, v5
    v_lshlrev_b32 v3, 1, v3
    s_lshl_b32 s12, s2, 6
    s_waitcnt lgkmcnt(0)""")
    srd(k, 24, 8, 0, D*2)
    srd(k, 28, 10, 0, D*3456*2)
    C, Wr, A, U = 8, 20, 56, 64
    for i in range(9): k(f"buffer_load_ushort v{C+i}, v3, s[24:27], 0 offen offset:{128*i}")
    for i in range(9): k(f"buffer_load_dwordx4 {v(Wr+4*i,4)}, v5, s[28:31], s12 offen\ns_add_u32 s12, s12, {64*6912}")
    srd(k, 24, 6, WS['MOD'], 3456*4)
    srd(k, 28, 6, WS['MODB'], 3456*2)
    k("s_waitcnt vmcnt(9)")
    interleave(k, [[f"v_lshlrev_b32 v{C+i}, 16, v{C+i}", f"v_mul_f32 v{U+i}, {fbits(-LOG2E)}, v{C+i}", f"v_exp_f32 v{U+i}, v{U+i}",
                    f"v_add_f32 v{U+i}, 1.0, v{U+i}", f"v_rcp_f32 v{U+i}, v{U+i}", f"v_mul_f32 v{C+i}, v{C+i}, v{U+i}",
                    f"v_cvt_pk_bf16_f32 v{C+i}, v{C+i}, v{C+i}", f"v_lshlrev_b32 v{C+i}, 16, v{C+i}"] for i in range(9)])
    for i in range(9):
        k(f"s_waitcnt vmcnt({8-i})")
        for j in range(4): k(f"v_lshlrev_b32 v{U+2*j}, 16, v{Wr+4*i+j}\nv_and_b32 v{U+2*j+1}, 0xffff0000, v{Wr+4*i+j}")
        c = C + i
        sel = "op_sel:[0,1,0] op_sel_hi:[1,1,1]" if c & 1 else "op_sel_hi:[1,0,1]"
        sel2 = "op_sel:[0,1] op_sel_hi:[1,1]" if c & 1 else "op_sel_hi:[1,0]"
        for j in range(4):
            if i == 0: k(f"v_pk_mul_f32 {v(A+2*j,2)}, {v(U+2*j,2)}, {v(c&~1,2)} {sel2}")
            else: k(f"v_pk_fma_f32 {v(A+2*j,2)}, {v(U+2*j,2)}, {v(c&~1,2)}, {v(A+2*j,2)} {sel}")
    k("s_nop 0")
    for r in (4, 8):
        for j in range(8): k(f"v_add_f32_dpp v{A+j}, v{A+j}, v{A+j} row_ror:{r} row_mask:0xf bank_mask:0xf")
    k(f"""v_lshrrev_b32 v3, 4, v0
    v_lshlrev_b32 v3, 7, v3
    v_lshl_add_u32 v3, v4, 5, v3
    s_mov_b32 exec_lo, 0x000f000f
    s_mov_b32 exec_hi, 0x000f000f
    ds_write_b128 v3, {v(A,4)}
    ds_write_b128 v3, {v(A+4,4)} offset:16
    s_mov_b64 exec, -1
    s_waitcnt lgkmcnt(0)
    s_barrier
    s_cmp_eq_u32 s20, 0
    s_cbranch_scc0 L_k0a_end
    v_and_b32 v3, 31, v1
    v_lshrrev_b32 v5, 5, v1
    v_lshlrev_b32 v4, 2, v3
    v_lshl_add_u32 v5, v5, 10, v4""")
    for i in range(8): k(f"ds_read_b32 v{8+i}, v5 offset:{128*i}")
    sdiv(k, 12, 2, 18, 108)
    k(f"""s_cmp_eq_u32 s12, 1
    s_cselect_b32 s13, 1.0, 0
    s_cmp_eq_u32 s12, 4
    s_cselect_b32 s13, 1.0, s13
    s_lshl_b32 s14, s2, 7
    s_lshl_b32 s15, s2, 6
    s_waitcnt lgkmcnt(0)
    v_pk_add_f32 v[8:9], v[8:9], v[10:11]
    v_pk_add_f32 v[12:13], v[12:13], v[14:15]
    v_pk_add_f32 v[8:9], v[8:9], v[12:13]
    v_add_f32 v8, v8, v9
    v_mov_b32 v9, v8
    s_nop 1
    v_permlane32_swap_b32 v8, v9
    v_add_f32 v8, v8, v9
    v_cvt_pk_bf16_f32 v8, v8, v8
    v_lshlrev_b32 v8, 16, v8
    v_add_f32 v8, s13, v8
    v_cvt_pk_bf16_f32 v8, v8, v8
    v_lshlrev_b32 v9, 16, v8
    v_lshlrev_b32 v3, 1, v3
    s_mov_b32 exec_hi, 0
    buffer_store_dword v9, v4, s[24:27], s14 offen
    buffer_store_short v8, v3, s[28:31], s15 offen
    s_mov_b32 exec_hi, -1
    s_branch L_k0a_fin""")
    k(f"""L_k0a_tr:
    v_and_b32 v9, 15, v1             ; n
    v_lshrrev_b32 v8, 4, v1          ; g
    v_lshrrev_b32 v3, 3, v1          ; e
    s_lshl_b32 s12, s20, 4
    v_add_u32 v10, s12, v9
    s_cmp_lt_u32 s2, 162
    s_cbranch_scc0 L_k0a_w72
    s_load_dwordx2 s[4:5], s[0:1], {KA['wqkv']}
    s_sub_u32 s10, s2, 108
    s_lshr_b32 s21, s10, 1
    s_and_b32 s22, s10, 1
    s_movk_i32 s16, 3456
    s_mov_b32 s23, {16*3456}
    s_movk_i32 s18, {8*3456}
    s_movk_i32 s17, 9999
    s_mov_b32 s26, {D*1728*2}
    s_mov_b32 s36, {WS['W1T']}
    s_movk_i32 s37, 14336
    s_lshl_b32 s12, s21, 6
    v_add_u32 v10, s12, v10          ; column""")
    udiv(k, 11, 10, 576, 1728)
    k("v_mul_u32_u24 v12, 576, v11\nv_sub_u32 v12, v10, v12")
    udiv(k, 13, 12, 18, 576)
    k(f"""v_mul_u32_u24 v14, 18, v13
    v_sub_u32 v14, v12, v14          ; d
    v_and_b32 v15, 1, v13
    v_lshl_add_u32 v15, v11, 1, v15  ; 2*part + (h&1)
    v_cmp_gt_u32 vcc, 16, v14
    v_lshl_add_u32 v16, v15, 1, v14
    v_add_u32 v16, {6*128-16}, v16
    v_lshl_add_u32 v17, v15, 7, v14
    v_cndmask_b32 v16, v16, v17, vcc
    v_lshlrev_b32 v16, 4, v16
    v_lshrrev_b32 v13, 1, v13
    s_mov_b32 s12, {9*14336}
    v_mad_u32_u24 v16, v13, s12, v16
    v_mov_b32 v17, 256
    v_mov_b32 v4, v3
    s_branch L_k0a_go
    L_k0a_w72:
    s_cmp_lt_u32 s2, 180
    s_cbranch_scc0 L_k0a_wout
    s_load_dwordx2 s[4:5], s[0:1], {KA['wo']}
    s_sub_u32 s10, s2, 162
    s_lshr_b32 s21, s10, 1
    s_and_b32 s22, s10, 1
    s_movk_i32 s23, {18*1152}
    s_movk_i32 s18, {4*1152}
    s_movk_i32 s17, 64
    s_mov_b32 s26, {D*D*2}
    s_mov_b32 s36, {WS['WOT']}
    s_mov_b32 s13, {9*9216}
    v_lshrrev_b32 v4, 2, v3
    v_and_b32 v5, 3, v3
    v_lshl_add_u32 v4, v4, 3, v5
    s_branch L_k0a_w72b
    L_k0a_wout:
    s_load_dwordx2 s[4:5], s[0:1], {KA['w_out']}
    s_sub_u32 s10, s2, 180
    s_lshr_b32 s21, s10, 3
    s_and_b32 s22, s10, 7
    s_movk_i32 s23, {16*1152}
    s_movk_i32 s18, {8*1152}
    s_movk_i32 s17, 9999
    s_mov_b32 s26, {FH*D*2}
    s_mov_b32 s36, {WS['WOUTT']}
    s_mov_b32 s13, {36*9216}
    v_mov_b32 v4, v3
    L_k0a_w72b:
    s_movk_i32 s16, 1152
    s_movk_i32 s37, 9216
    s_lshl_b32 s12, s21, 6
    v_add_u32 v10, s12, v10""")
    udiv(k, 11, 10, 72, 576)
    k(f"""v_mul_u32_u24 v12, 72, v11
    v_sub_u32 v12, v10, v12          ; r
    v_cmp_gt_u32 vcc, 64, v12
    v_lshrrev_b32 v13, 4, v12
    v_and_b32 v14, 15, v12
    v_lshl_add_u32 v13, v13, 7, v14
    v_lshlrev_b32 v16, 4, v13
    v_mad_u32_u24 v16, v11, s13, v16
    v_mov_b32 v17, 128
    v_mov_b32 v14, 256
    v_cndmask_b32 v17, v17, v14, vcc
    L_k0a_go:
    v_mad_u32_u24 v16, v8, v17, v16  ; + g*cs
    v_lshlrev_b32 v17, 2, v17
    s_and_b32 s12, s22, 1
    v_mul_u32_u24 v18, s12, v17
    v_sub_u32 v17, v17, v18
    v_add_u32 v17, v16, v17
    v_add_u32 v16, v16, v18          ; even i
    v_and_b32 v5, 7, v1
    v_lshrrev_b32 v6, 1, v3
    v_lshlrev_b32 v6, 1, v6
    v_xor_b32 v5, v5, v6
    v_lshlrev_b32 v5, 4, v5
    v_mad_u32_u24 v4, v4, s16, v5
    v_lshrrev_b32 v6, 1, v3
    v_mul_u32_u24 v6, 18, v6
    v_and_b32 v7, 1, v3
    v_add_u32 v6, v6, v7
    v_mad_u32_u24 v5, v6, s16, v5
    s_mul_i32 s14, s22, 36
    s_mul_i32 s15, s20, 9
    s_add_u32 s14, s14, s15
    s_mul_i32 s15, s15, 1024
    s_lshl_b32 s21, s21, 7
    s_mov_b32 s19, 9
    s_waitcnt lgkmcnt(0)
    s_mov_b32 s24, s4
    s_mov_b32 s25, s5
    s_mov_b32 s27, 0x20000
    L_k0a_dma:
    s_and_b32 s12, s14, 1
    s_mul_i32 s13, s12, s18
    s_lshl_b32 s12, s12, 6
    s_lshr_b32 s10, s14, 1
    s_mul_i32 s10, s10, s23
    s_add_u32 s10, s10, s13
    s_mov_b32 m0, s15
    s_cmp_lt_u32 s14, s17
    s_cbranch_scc1 L_k0a_d1
    s_mul_i32 s10, s14, {72*1152}
    s_sub_u32 s10, s10, {(64*72-16)*1152}
    v_mov_b32 v4, v5
    L_k0a_d1:
    v_xor_b32 v6, s12, v4
    s_add_u32 s10, s10, s21
    buffer_load_dwordx4 v6, s[24:27], s10 offen lds
    s_add_u32 s14, s14, 1
    s_add_u32 s15, s15, 1024
    s_sub_u32 s19, s19, 1
    s_cmp_lg_u32 s19, 0
    s_cbranch_scc1 L_k0a_dma""")
    srd(k, 28, 6, 0, 16*9*14336 if False else WS['END'], extra=36)
    k(f"""v_lshrrev_b32 v3, 2, v9          ; r4
    v_lshrrev_b32 v4, 1, v3
    v_and_b32 v5, 1, v8
    v_lshl_add_u32 v4, v5, 1, v4
    v_xor_b32 v4, s20, v4
    v_lshlrev_b32 v4, 5, v4
    v_lshl_add_u32 v4, v3, 7, v4
    v_lshl_add_u32 v4, v8, 10, v4
    v_and_b32 v5, 3, v1
    v_lshl_add_u32 v4, v5, 3, v4
    v_xor_b32 v5, 64, v4
    s_mul_i32 s14, s22, 9
    s_waitcnt vmcnt(0)
    s_barrier""")
    dg.stamp()
    for i in range(9):
        k(f"ds_read_b64_tr_b16 {v(20+4*i,2)}, v4 offset:{4096*i}\nds_read_b64_tr_b16 {v(22+4*i,2)}, v5 offset:{4096*i+512}")
        if i == 6: k("s_waitcnt lgkmcnt(12)")
    for i in range(9):
        k(f"s_lshr_b32 s10, s14, 1\ns_mul_i32 s10, s10, s37\ns_add_u32 s14, s14, 1\ns_waitcnt lgkmcnt({min(16-2*i-1, 15) if i == 0 else 16-2*i})")
        k(f"buffer_store_dwordx4 {v(20+4*i,4)}, v{16+(i&1)}, s[28:31], s10 offen")
    k("L_k0a_fin:")
    dg.stamp()
    if diag:
        k("s_waitcnt vmcnt(0)")
        dg.stamp()
        dg.dump(6, 20, 16)
    k("L_k0a_end:\ns_endpgm")
    return dict(name="k0a_kernel", text=k.text(), grid=252, block=256, lds=36864, vgpr=80)


def k0b(diag=False):
    k = Asm("k0b")
    dg = Diag(k, diag, 7)
    GL, RL = 36864, 36864 + 5120
    dg.stamp()
    k(f"""s_cmp_ge_u32 s2, 256
    s_cbranch_scc1 L_k0b_end
    s_load_dwordx2 s[6:7], s[0:1], {KA['ws']}
    v_lshrrev_b32 v2, 6, v0
    v_and_b32 v1, 63, v0
    v_readfirstlane_b32 s20, v2
    s_cmp_ge_u32 s20, 4
    s_cbranch_scc0 L_k0b_w2
    s_load_dwordx2 s[4:5], s[0:1], {KA['x']}
    s_lshl_b32 s10, s2, 2
    s_add_u32 s10, s10, s20
    s_sub_u32 s10, s10, 4
    s_mul_i32 s12, s10, 2304
    v_and_b32 v3, 31, v1
    v_lshlrev_b32 v3, 4, v3
    v_lshrrev_b32 v4, 5, v1
    v_mul_u32_u24 v4, 1152, v4
    v_add_u32 v4, v4, v3""")
    X, G, SA_, U = 8, 20, 32, 44
    for i in range(4): k(f"v_mov_b32 v{X+8+i}, 0")
    k("s_waitcnt lgkmcnt(0)")
    srd(k, 24, 4, 0, S*D*2)
    srd(k, 28, 6, WS['MODB'], 3456*2)
    for i in range(3):
        if i == 2: k("s_mov_b32 exec_lo, 0xff\ns_mov_b32 exec_hi, 0xff")
        k(f"buffer_load_dwordx4 {v(X+4*i,4)}, v4, s[24:27], s12 offen offset:{512*i}")
    k("s_mov_b64 exec, -1")
    for i in range(3):
        k(f"buffer_load_dwordx4 {v(SA_+4*i,4)}, v3, s[28:31], 0 offen offset:{512*i}")
        k(f"buffer_load_dwordx4 {v(G+4*i,4)}, v3, s[28:31], 0 offen offset:{1152+512*i}")
    srd(k, 24, 6, WS['H1'], S*D*2)
    k("s_barrier\ns_waitcnt vmcnt(6)")
    for j in range(12): k(f"v_lshlrev_b32 v{U+2*j}, 16, v{X+j}\nv_and_b32 v{U+2*j+1}, 0xffff0000, v{X+j}")
    k(f"v_pk_add_f32 v[68:69], {v(U,2)}, {v(U+2,2)}\nv_pk_mul_f32 v[70:71], {v(U,2)}, {v(U,2)}\nv_pk_fma_f32 v[70:71], {v(U+2,2)}, {v(U+2,2)}, v[70:71]")
    for j in range(2, 12): k(f"v_pk_add_f32 v[68:69], v[68:69], {v(U+2*j,2)}\nv_pk_fma_f32 v[70:71], {v(U+2*j,2)}, {v(U+2*j,2)}, v[70:71]")
    k("v_add_f32 v68, v68, v69\nv_add_f32 v69, v70, v71\ns_nop 1")
    for r in (8, 4, 2, 1):
        k(f"v_add_f32_dpp v68, v68, v68 row_ror:{r} row_mask:0xf bank_mask:0xf\nv_add_f32_dpp v69, v69, v69 row_ror:{r} row_mask:0xf bank_mask:0xf\ns_nop 0")
    k(f"""v_mov_b32 v70, v68
    v_mov_b32 v71, v69
    s_mov_b32 s14, {fbits(1.0/D)}
    v_mov_b32 v72, {fbits(1e-5)}
    v_permlane16_swap_b32 v68, v70
    v_permlane16_swap_b32 v69, v71
    v_pk_add_f32 v[68:69], v[68:69], v[70:71]
    v_mul_f32 v68, s14, v68
    v_fma_f32 v69, v69, s14, v72
    v_fma_f32 v69, -v68, v68, v69
    v_rsq_f32 v70, v69
    s_nop 0
    v_mul_f32 v71, -v68, v70
    s_waitcnt vmcnt(0)""")
    for j in range(12): k(f"v_pk_fma_f32 {v(U+2*j,2)}, {v(U+2*j,2)}, v[70:71], v[70:71] op_sel:[0,0,1] op_sel_hi:[1,0,1]")
    for j in range(12):
        t = 72 + 4*(j & 1)
        k(f"""v_lshlrev_b32 v{t}, 16, v{G+j}
        v_and_b32 v{t+1}, 0xffff0000, v{G+j}
        v_lshlrev_b32 v{t+2}, 16, v{SA_+j}
        v_and_b32 v{t+3}, 0xffff0000, v{SA_+j}
        v_pk_fma_f32 {v(U+2*j,2)}, {v(U+2*j,2)}, {v(t,2)}, {v(t+2,2)}
        v_cvt_pk_bf16_f32 v{X+j}, v{U+2*j}, v{U+2*j+1}""")
        if j % 4 == 3:
            if j == 11: k("s_mov_b32 exec_lo, 0xff\ns_mov_b32 exec_hi, 0xff")
            k(f"buffer_store_dwordx4 {v(X+j-3,4)}, v4, s[24:27], s12 offen offset:{512*(j//4)}")
    k(f"""s_mov_b64 exec, -1
    s_branch L_k0b_fin
    L_k0b_w2:
    s_cmp_ge_u32 s2, 144
    s_cbranch_scc1 L_k0b_end
    s_load_dwordx2 s[4:5], s[0:1], {KA['w_in']}
    v_lshrrev_b32 v3, 2, v1
    v_mul_u32_u24 v3, 9216, v3
    v_lshrrev_b32 v4, 5, v1
    v_lshlrev_b32 v4, 1, v4
    v_xor_b32 v4, v4, v1
    v_and_b32 v4, 3, v4
    v_lshl_add_u32 v3, v4, 4, v3
    v_lshlrev_b32 v2, 4, v1
    s_mul_i32 s12, s20, {144*9216}
    s_lshl_b32 s10, s2, 6
    s_add_u32 s12, s12, s10
    s_mul_i32 s13, s20, 9216
    s_lshl_b32 s14, s20, 10
    s_waitcnt lgkmcnt(0)""")
    srd(k, 24, 4, 0, D*F*2)
    srd(k, 28, 6, WS['MOD'] + 3*D*4, 3*D*4)
    k(f"s_add_u32 m0, s14, {GL}\ns_nop 0\nbuffer_load_dwordx4 v2, s[28:31], s14 offen lds\ns_mov_b32 m0, {GL}\ns_movk_i32 s14, 4096\ns_add_u32 m0, m0, s14\ns_nop 0\nbuffer_load_dwordx4 v2, s[28:31], s14 offen lds")
    for i in range(9):
        k(f"s_add_u32 m0, s13, {1024*i}\ns_nop 0\nbuffer_load_dwordx4 v3, s[24:27], s12 offen lds\ns_add_u32 s12, s12, {16*9216}")
    k(f"""s_and_b32 s16, s20, 1
    s_lshr_b32 s17, s20, 1           ; k half
    s_lshl_b32 s10, s2, 1
    s_add_u32 s10, s10, s16
    s_cmp_lt_u32 s10, 144
    s_cselect_b32 s11, 9, 0
    s_cselect_b32 s12, 0, 144
    s_sub_u32 s10, s10, s12""")
    sdiv(k, 12, 10, 9, 144)
    k(f"""s_mul_i32 s13, s12, 9
    s_sub_u32 s10, s10, s13
    s_add_u32 s10, s10, s11
    s_mul_i32 s13, s12, 18
    s_add_u32 s13, s13, s10
    s_lshl_b32 s40, s13, 6           ; v2 offset
    s_mul_i32 s12, s12, {9*36864}
    s_lshl_b32 s10, s10, 11
    s_add_u32 s41, s12, s10
    s_mul_i32 s10, s17, {4*36864}
    s_add_u32 s41, s41, s10
    v_and_b32 v9, 15, v1
    v_lshrrev_b32 v8, 4, v1
    v_lshlrev_b32 v10, 4, v9
    v_lshl_add_u32 v10, v8, 8, v10
    s_lshl_b32 s10, s17, 10
    v_add_u32 v16, s10, v10
    s_xor_b32 s10, s10, 1024
    v_add_u32 v17, s10, v10          ; odd i
    v_lshrrev_b32 v3, 2, v9
    v_and_b32 v4, 1, v8
    v_xor_b32 v4, s16, v4
    v_lshlrev_b32 v4, 5, v4
    v_lshl_add_u32 v4, v3, 6, v4
    v_lshl_add_u32 v4, v8, 9, v4
    v_and_b32 v5, 3, v1
    v_lshl_add_u32 v4, v5, 3, v4
    s_mul_i32 s10, s17, 18432
    v_add_u32 v4, s10, v4
    s_mul_i32 s10, s17, 1152
    s_add_u32 s10, s10, {GL}
    v_lshl_add_u32 v5, v8, 5, s10
    s_lshl_b32 s10, s20, 7
    s_add_u32 s10, s10, {RL}
    v_lshl_add_u32 v6, v9, 3, s10
    s_xor_b32 s10, s10, 256
    v_lshl_add_u32 v7, v9, 3, s10""")
    srd(k, 24, 6, WS['W2'], F*D*2)
    srd(k, 28, 6, WS['V2'], F*4)
    k("s_waitcnt vmcnt(0)\ns_barrier")
    dg.stamp()
    Pp, RW, GS, UA, VA, T = 20, 92, 100, 132, 134, 136
    def rds(i):
        b = i & 1
        k(f"ds_read_b64_tr_b16 {v(RW+4*b,2)}, v4 offset:{2048*i}\nds_read_b64_tr_b16 {v(RW+4*b+2,2)}, v4 offset:{2048*i+256}")
        k(f"ds_read_b128 {v(GS+16*b,4)}, v5 offset:{128*i+2304}\nds_read_b128 {v(GS+16*b+4,4)}, v5 offset:{128*i+2304+16}")
        k(f"ds_read_b128 {v(GS+16*b+8,4)}, v5 offset:{128*i}\nds_read_b128 {v(GS+16*b+12,4)}, v5 offset:{128*i+16}")
    rds(0)
    for i in range(9):
        b = i & 1
        if i < 8: rds(i+1)
        k(f"s_waitcnt lgkmcnt({6 if i < 8 else 0})")
        for j in range(4): k(f"v_lshlrev_b32 v{T+2*j}, 16, v{RW+4*b+j}\nv_and_b32 v{T+2*j+1}, 0xffff0000, v{RW+4*b+j}")
        for j in range(4): k(f"v_pk_mul_f32 {v(Pp+8*i+2*j,2)}, {v(T+2*j,2)}, {v(GS+16*b+2*j,2)}")
        for j in range(4):
            if i == 0 and j == 0:
                k(f"v_pk_mul_f32 {v(VA,2)}, {v(T,2)}, {v(GS+8,2)}\nv_pk_add_f32 {v(UA,2)}, {v(Pp,2)}, 0 op_sel_hi:[1,0]")
            else:
                k(f"v_pk_fma_f32 {v(VA,2)}, {v(T+2*j,2)}, {v(GS+16*b+8+2*j,2)}, {v(VA,2)}\nv_pk_add_f32 {v(UA,2)}, {v(UA,2)}, {v(Pp+8*i+2*j,2)}")
    k(f"v_add_f32 v{UA}, v{UA}, v{UA+1}\nv_add_f32 v{UA+1}, v{VA}, v{VA+1}")
    for op in ("v_permlane16_swap_b32", "v_permlane32_swap_b32"):
        k(f"v_mov_b32 v{VA}, v{UA}\nv_mov_b32 v{VA+1}, v{UA+1}\ns_nop 1\n{op} v{UA}, v{VA}\n{op} v{UA+1}, v{VA+1}\nv_pk_add_f32 {v(UA,2)}, {v(UA,2)}, {v(VA,2)}")
    k(f"""ds_write_b64 v6, {v(UA,2)}
    s_waitcnt lgkmcnt(0)
    s_barrier
    ds_read_b64 {v(VA,2)}, v7
    v_lshlrev_b32 v9, 2, v9
    s_waitcnt lgkmcnt(0)
    v_pk_add_f32 {v(UA,2)}, {v(UA,2)}, {v(VA,2)}
    v_mul_f32 v{VA}, {fbits(-1.0/D)}, v{UA}
    s_mov_b64 exec, 0xffff
    buffer_store_dword v{UA+1}, v9, s[28:31], s40 offen
    s_mov_b64 exec, -1""")
    for i in range(9):
        for j in range(4): k(f"v_pk_add_f32 {v(Pp+8*i+2*j,2)}, {v(Pp+8*i+2*j,2)}, {v(VA,2)} op_sel_hi:[1,0]")
        for j in range(4): k(f"v_cvt_pk_bf16_f32 v{Pp+8*i+j}, v{Pp+8*i+2*j}, v{Pp+8*i+2*j+1}")
        k(f"buffer_store_dwordx4 {v(Pp+8*i,4)}, v{16+(i&1)}, s[24:27], s41 offen")
        k(f"s_xor_b32 s10, s17, {i & 1}\ns_mul_i32 s10, s10, 36864\ns_add_u32 s41, s41, s10")
    k("L_k0b_fin:")
    dg.stamp()
    if diag:
        k("s_waitcnt vmcnt(0)")
        dg.stamp()
        dg.dump(6, 20, 16)
    k("L_k0b_end:\ns_endpgm")
    return dict(name="k0b_kernel", text=k.text(), grid=256, block=512, lds=RL + 512, vgpr=144)
```

```python
from gcore import *
from k4 import fbits, interleave
import math
QS = DH ** -0.5 * math.log2(math.e)
VH = 64*1216

def k1(diag=False, prio=1, NS=4, pro=3):
    k = Asm("k1")
    dg = Diag(k, diag, 1)
    TB, WB = 0, NS*16384
    dg.stamp()
    k(f"""s_cmp_ge_u32 s2, 256
    s_cbranch_scc1 L_k1_end
    s_load_dwordx2 s[6:7], s[0:1], {KA['ws']}
    v_lshrrev_b32 v2, 6, v0
    v_and_b32 v1, 63, v0
    v_readfirstlane_b32 s20, v2
    s_and_b32 s10, s2, 7
    s_lshr_b32 s11, s2, 3
    s_lshl_b32 s10, s10, 1
    s_lshr_b32 s12, s11, 4
    s_add_u32 s22, s10, s12
    s_and_b32 s21, s11, 15
    s_cmp_ge_u32 s20, 4
    s_cbranch_scc0 L_k1_cons
    s_sub_u32 s19, s20, 4
    s_mul_i32 s10, s21, {128*1152}
    s_mul_i32 s11, s22, {9*14336}""")
    ld = Loader(k, [dict(mode='row', n=16, srd=24, lds=TB, stride=16384, ptr=6, off=WS['H1'], soff=10, size=128*1152, pitch=1152),
                    dict(mode='img', n=14, srd=28, lds=WB, stride=14336, ptr=6, off=WS['W1T'], soff=11, size=9*14336)],
                9, NS, 19, pro=pro)
    dl = Diag(k, diag, 1); dl.i = 1
    ld.setup_v()
    k("s_waitcnt lgkmcnt(0)")
    ld.setup_srd()
    dl.stamp()
    def tail(i):
        if i == 0:
            srd(k, 24, 6, WS['XCH'], 16*16*128*8)
            k(f"""s_lshl_b32 s10, s2, 10
            s_lshl_b32 s11, s19, 8
            s_add_u32 s10, s10, s11
            v_lshlrev_b32 v20, 2, v1
            v_mov_b32 v21, -1
            buffer_store_dword v21, v20, s[24:27], s10 offen""")
            return 1
    ld.run(tail, dl if diag else None)
    dl.stamp()
    dl.dump(6, 20, 16)
    k("s_endpgm\nL_k1_cons:")
    if prio: k(f"s_setprio {prio}")
    ACC, F0, F1 = 16, 80, 116
    k("s_lshl_b32 s13, s20, 12")
    frag_addr(k, 2, 3, 10, off_sreg=13)
    k(f"""v_lshlrev_b32 v4, 4, v1
    v_add_u32 v4, {WB}, v4
    v_lshrrev_b32 v8, 4, v1          ; g
    v_and_b32 v9, 15, v1             ; n
    s_lshl_b32 s10, s21, 2
    s_add_u32 s17, s10, s20
    s_lshl_b32 s44, s22, 17
    s_lshl_b32 s10, s17, 10
    s_add_u32 s44, s44, s10
    s_add_u32 s45, s44, 65536
    s_add_u32 s46, s44, {WS['KM']-WS['QM']}
    s_add_u32 s47, s46, 65536
    s_lshl_b32 s48, s22, 14
    s_lshl_b32 s10, s17, 7
    s_add_u32 s48, s48, s10
    s_add_u32 s48, s48, {WS['QT']-WS['QM']}
    s_add_u32 s49, s48, 8192
    s_mul_i32 s50, s22, {2*VH}
    s_mul_i32 s10, s17, 1216
    s_add_u32 s50, s50, s10
    s_add_u32 s50, s50, {WS['VT']-WS['QM']}
    s_add_u32 s51, s50, {VH}
    v_and_b32 v10, 1, v8
    v_lshlrev_b32 v10, 8, v10
    v_lshrrev_b32 v11, 1, v8
    v_lshl_add_u32 v10, v11, 9, v10
    v_lshl_add_u32 v5, v9, 4, v10
    v_mul_u32_u24 v6, {WS['KT']-WS['QT']}, v8
    v_lshl_add_u32 v6, v9, 2, v6
    v_cmp_eq_u32 vcc, 4, v9
    v_mul_u32_u24 v10, 304, v8
    v_mov_b32 v12, 18
    v_cndmask_b32 v11, v9, v12, vcc
    v_lshl_add_u32 v7, v11, 4, v10
    v_cmp_gt_u32 vcc, 12, v9
    v_and_b32 v11, 1, v9
    v_add_u32 v12, 16, v11
    v_bfe_u32 v13, v9, 1, 1
    v_cndmask_b32 v12, 4, v12, vcc
    v_cndmask_b32 v13, v11, v13, vcc
    v_lshl_add_u32 v12, v12, 4, v10
    v_mul_u32_u24 v13, {VH}, v13
    v_add_u32 v14, v12, v13
    s_mov_b64 s[52:53], vcc
    v_cmp_eq_u32 vcc, 0, v8
    v_mov_b32 v12, {fbits(QS)}
    v_mov_b32 v13, v12
    v_cndmask_b32 v15, 1.0, v12, vcc
    s_waitcnt lgkmcnt(0)""")
    srd(k, 24, 6, WS['QM'], WS['O'] - WS['QM'])
    frags = [dict(r=(F0+4*j, F1+4*j), a=(2, 3), imm=j*2048) for j in range(2)]
    frags += [dict(r=(F0+8+4*b, F1+8+4*b), a=(4, None), imm=b*2048) for b in range(7)]
    acc = lambda b, tj: ACC + 8*b + 4*tj
    mf = []
    for b in range(8):
        for tj in range(2):
            wb = 2 + min(b, 6)
            mf.append((acc(b, tj), wb, tj) if b in (0, 1, 2, 3, 6) else (acc(b, tj), tj, wb))
    dg.stamp()
    GemmLoop(k, frags, mf, 9, NS, 2, [(2, 0), (3, 0), (4, 1)], [16384, 14336], bar_pos=1).emit()
    dg.stamp()
    P = F0
    for b in range(8):
        d = P + 4*b
        a = acc(b, 0)
        if b < 2:
            for h in range(4): k(f"v_pk_mul_f32 {v(a+2*h,2)}, {v(a+2*h,2)}, v[12:13]")
        if b == 6:
            for h in range(4): k(f"v_pk_mul_f32 {v(a+2*h,2)}, {v(a+2*h,2)}, v[14:15] op_sel:[0,1] op_sel_hi:[1,1]")
        if b == 7: k("s_nop 0")
        for h in range(4): k(f"v_cvt_pk_bf16_f32 v{d+h}, v{a+2*h}, v{a+2*h+1}")
        if b < 4:
            k(f"s_nop 1\nv_permlane16_swap_b32 v{d}, v{d+2}\nv_permlane16_swap_b32 v{d+1}, v{d+3}")
            k(f"buffer_store_dwordx4 {v(d,4)}, v5, s[24:27], s{44+b} offen")
        elif b < 6:
            k(f"s_nop 1\nv_permlane32_swap_b32 v{d}, v{d+2}\nv_permlane32_swap_b32 v{d+1}, v{d+3}")
            k(f"buffer_store_dwordx4 {v(d,4)}, v7, s[24:27], s{50+b-4} offen")
        elif b == 6:
            k("s_mov_b32 exec_hi, 0")
            for h in range(4): k(f"buffer_store_dword v{d+h}, v6, s[24:27], s{48+(h&1)} offen offset:{(h>>1)*64}")
            k("s_mov_b32 exec_hi, -1")
        else:
            k("v_mov_b32 v10, 0x3f803f80")
            for h in range(4): k(f"v_cndmask_b32 v{d+h}, v10, v{d+h}, s[52:53]")
            k(f"s_nop 1\nv_permlane32_swap_b32 v{d}, v{d+2}\nv_permlane32_swap_b32 v{d+1}, v{d+3}")
            k(f"s_mov_b32 exec_lo, 0x3f003f00\ns_mov_b32 exec_hi, 0x3f003f00\nbuffer_store_dwordx4 {v(d,4)}, v14, s[24:27], s50 offen\ns_mov_b64 exec, -1")
    dg.stamp()
    if diag:
        k("s_waitcnt vmcnt(0)")
        dg.stamp()
        dg.dump(6, 20, 16)
    k("L_k1_end:\ns_endpgm")
    return dict(name="k1_kernel", text=k.text(), grid=256, block=512, lds=NS*30720, vgpr=256 if DBG.get('steps') else 152)
```

```python
from gcore import *
from k4 import fbits
VH = 64*1216

def k2(diag=False, prefetch=True, force_slow=False):
    k = Asm("k2")
    dg = Diag(k, diag, 2)
    KML, KTL, VL = 0, 65536, 73728
    lds = VL + VH + 2048
    dg.stamp()
    k(f"""s_cmp_ge_u32 s2, 256
    s_cbranch_scc1 L_k2_end
    s_load_dwordx2 s[6:7], s[0:1], {KA['ws']}
    s_load_dwordx2 s[4:5], s[0:1], {KA['w_sp']}
    v_lshrrev_b32 v2, 6, v0
    v_and_b32 v1, 63, v0
    v_readfirstlane_b32 s20, v2
    s_and_b32 s10, s2, 7
    s_lshl_b32 s10, s10, 2
    s_bfe_u32 s11, s2, 0x20003
    s_add_u32 s21, s10, s11          ; head
    s_lshr_b32 s22, s2, 5
    s_lshl_b32 s10, s22, 3
    s_add_u32 s17, s10, s20
    s_lshl_b32 s12, s21, 16
    s_lshl_b32 s10, s17, 10
    s_add_u32 s40, s12, s10          ; q main
    s_lshl_b32 s13, s21, 13
    s_lshl_b32 s10, s17, 7
    s_add_u32 s41, s13, s10
    s_add_u32 s41, s41, {WS['QT']-WS['QM']}
    s_lshl_b32 s14, s20, 10
    s_add_u32 s42, s12, s14
    s_add_u32 s42, s42, {WS['KM']-WS['QM']}
    s_mul_i32 s43, s21, {VH}
    s_add_u32 s43, s43, s14
    s_add_u32 s43, s43, {WS['VT']-WS['QM']}      ; v source
    s_add_u32 s44, s13, {WS['KT']-WS['QM']}
    s_add_u32 s10, s43, 8192
    s_cmp_lt_u32 s20, 2
    s_cselect_b32 s44, s10, s44
    s_movk_i32 s48, 1024
    s_cselect_b32 s48, 9728, s48
    s_add_u32 s45, s14, {KML}
    s_add_u32 s46, s14, {VL}
    s_add_u32 s10, s46, 8192
    s_cmp_lt_u32 s20, 2
    s_cselect_b32 s47, s10, {KTL}
    v_lshlrev_b32 v2, 4, v1
    v_and_b32 v6, 31, v1
    v_lshlrev_b32 v7, 2, v6
    v_add_u32 v3, {KTL}, v7
    v_cmp_eq_u32 vcc, 4, v6
    v_lshrrev_b32 v8, 5, v1          ; hf
    v_mul_u32_u24 v9, 304, v8
    v_cndmask_b32 v10, v6, 18, vcc
    v_cmp_gt_u32 vcc, 18, v6
    v_add_u32 v9, {VL}, v9
    v_mov_b32 v5, v2
    v_cndmask_b32 v10, 4, v10, vcc
    v_lshl_add_u32 v4, v10, 4, v9
    s_lshl_b32 s49, s2, 15
    s_add_u32 s49, s49, s14
    s_sub_u32 s49, s49, 4096
    s_waitcnt lgkmcnt(0)""")
    srd(k, 24, 6, WS['QM'], WS['O'] - WS['QM'])
    srd(k, 32, 4, 0, S*S*2)
    QM_, QT_, KM_, KT_, V0, V1, P, SA, SB, O, DUM = 12, 16, 20, 24, 28, 32, 36, 44, 60, 76, 92
    def dma():
        lab = k.lab("x")
        k(f"""s_mov_b32 m0, s45
        s_add_u32 s45, s45, 8192
        buffer_load_dwordx4 v5, s[24:27], s42 offen lds
        s_mov_b32 m0, s46
        s_add_u32 s46, s46, 9728
        buffer_load_dwordx4 v5, s[24:27], s43 offen lds
        s_add_u32 s42, s42, 8192
        s_add_u32 s43, s43, 9728
        s_cmp_lt_u32 s20, 3
        s_cbranch_scc0 {lab}
        s_mov_b32 m0, s47
        s_add_u32 s47, s47, s48
        buffer_load_dwordx4 v5, s[24:27], s44 offen lds
        s_add_u32 s44, s44, s48
        {lab}:""")
    dma()
    k(f"""buffer_load_dwordx4 {v(QM_,4)}, v2, s[24:27], s40 offen
    buffer_load_dword v{QT_}, v7, s[24:27], s41 offen""")
    for r in (QT_+1, QT_+2, QT_+3, KT_+1, KT_+2, KT_+3): k(f"v_mov_b32 v{r}, 0")
    for i in range(16): k(f"v_mov_b32 v{O+i}, 0")
    srd(k, 28, 6, WS['O'], S*D*2)
    k(f"""s_lshl_b32 s10, s17, 1
    s_mul_i32 s50, s10, 18432
    s_lshr_b32 s11, s21, 2
    s_lshl_b32 s11, s11, 8
    s_and_b32 s12, s21, 3
    s_lshl_b32 s12, s12, 2
    s_add_u32 s51, s50, s11
    s_add_u32 s51, s51, s12
    s_add_u32 s51, s51, {64*256}
    s_lshl_b32 s11, s21, 9
    s_add_u32 s50, s50, s11
    s_mov_b32 s52, 8
    s_waitcnt vmcnt(0)
    s_barrier""")
    dg.stamp()
    dma()
    k(f"""ds_read_b128 {v(KM_,4)}, v2
    ds_read_b32 v{KT_}, v3
    s_mov_b32 exec_lo, 0
    v_mov_b32 v{QT_}, 0
    s_mov_b32 exec_lo, -1
    s_waitcnt lgkmcnt(0)
    v_mfma_f32_32x32x16_bf16 {v(SA,16)}, {v(KM_,4)}, {v(QM_,4)}, 0
    v_mfma_f32_32x32x16_bf16 {v(SA,16)}, {v(KT_,4)}, {v(QT_,4)}, {v(SA,16)}
    ds_read_b128 {v(KM_,4)}, v2 offset:1024
    ds_read_b32 v{KT_}, v3 offset:128
    ds_read_b128 {v(V0,4)}, v4
    ds_read_b128 {v(V1,4)}, v4 offset:608
    s_nop 7
    .p2align 3
    L_k2_loop:""")
    ex = lambda b, lo, hi: [k(f"v_exp_f32 v{b+i}, v{b+i}") for i in range(lo, hi)]
    cv = lambda b, lo, hi: [k(f"v_cvt_pk_bf16_f32 v{P+i}, v{b+2*i}, v{b+2*i+1}") for i in range(lo, hi)]
    for t in range(8):
        C, N = (SA, SB) if t % 2 == 0 else (SB, SA)
        if t == 6:
            lab = k.lab("nd")
            k(f"s_waitcnt vmcnt(0)\ns_barrier\ns_cmp_gt_u32 s52, 2\ns_cbranch_scc0 {lab}")
            dma()
            k(f"{lab}:")
            if prefetch:
                lab = k.lab("np")
                k(f"s_cmp_ge_u32 s20, 4\ns_cbranch_scc0 {lab}\nbuffer_load_dwordx4 {v(DUM,4)}, v5, s[32:35], s49 offen\n{lab}:\ns_add_u32 s49, s49, 4096")
        k(f"s_waitcnt lgkmcnt(3)\nv_mfma_f32_32x32x16_bf16 {v(N,16)}, {v(KM_,4)}, {v(QM_,4)}, 0")
        k(f"ds_read_b128 {v(KM_,4)}, v2 offset:{(t+2)*1024}")
        ex(C, 0, 4)
        k(f"s_waitcnt lgkmcnt(3)\nv_mfma_f32_32x32x16_bf16 {v(N,16)}, {v(KT_,4)}, {v(QT_,4)}, {v(N,16)}")
        k(f"ds_read_b32 v{KT_}, v3 offset:{(t+2)*128}")
        ex(C, 4, 8); cv(C, 0, 3); ex(C, 8, 9); cv(C, 3, 4); ex(C, 9, 11)
        k(f"s_waitcnt lgkmcnt(3)\nv_mfma_f32_32x32x16_bf16 {v(O,16)}, {v(V0,4)}, {v(P,4)}, {v(O,16)}")
        k(f"ds_read_b128 {v(V0,4)}, v4 offset:{(t+1)*1216}")
        ex(C, 11, 16); cv(C, 4, 8)
        k(f"s_nop 0\ns_waitcnt lgkmcnt(3)\nv_mfma_f32_32x32x16_bf16 {v(O,16)}, {v(V1,4)}, {v(P+4,4)}, {v(O,16)}")
        k(f"ds_read_b128 {v(V1,4)}, v4 offset:{(t+1)*1216+608}")
    k(f"""v_add_u32 v2, 8192, v2
    v_add_u32 v3, 1024, v3
    v_add_u32 v4, 9728, v4
    s_sub_u32 s52, s52, 1
    s_cmp_lg_u32 s52, 0
    s_cbranch_scc1 L_k2_loop""")
    dg.stamp()
    k(f"""s_nop 7
    s_nop 3
    s_mov_b32 s10, {fbits(2.0**-64)}
    s_mov_b32 s11, {fbits(2.0**64)}
    v_cmp_nle_f32 vcc, s10, v{O+10}
    v_cmp_nge_f32 s[12:13], s11, v{O+10}
    s_nop 1
    s_or_b64 vcc, vcc, s[12:13]
    s_cbranch_vcc{'nz' if not force_slow else 'z'} L_k2_slow
    L_k2_fin:
    v_rcp_f32 v10, v{O+10}
    v_and_b32 v11, 15, v1
    v_bfe_u32 v9, v1, 4, 1
    v_mul_u32_u24 v9, 18432, v9
    v_lshl_add_u32 v9, v11, 4, v9""")
    for i in range(5): k(f"v_pk_mul_f32 {v(O+2*i,2)}, {v(O+2*i,2)}, v[10:11] op_sel_hi:[1,0]")
    k("v_lshl_add_u32 v8, v8, 8, v9")
    for i in range(5): k(f"v_cvt_pk_bf16_f32 v{P+i}, v{O+2*i}, v{O+2*i+1}")
    k(f"""buffer_store_dwordx4 {v(P,4)}, v8, s[28:31], s50 offen
    s_mov_b32 exec_hi, 0
    buffer_store_dword v{P+4}, v9, s[28:31], s51 offen
    s_mov_b32 exec_hi, -1""")
    dg.stamp()
    if diag:
        k("s_waitcnt vmcnt(0)")
        dg.stamp()
        dg.dump(6, 20, 16)
    k("L_k2_end:\ns_endpgm")
    M, T = SB, SB + 1
    k(f"""L_k2_slow:
    s_waitcnt lgkmcnt(0)
    v_subrev_u32 v2, {8*8192}, v2
    v_subrev_u32 v3, {8*1024}, v3
    v_subrev_u32 v4, {8*9728}, v4
    v_mov_b32 v{M}, {fbits(-3.0e38)}
    s_mov_b32 s52, 64""")
    for i in range(16): k(f"v_mov_b32 v{O+i}, 0")
    k(f"""L_k2_sl:
    ds_read_b128 {v(KM_,4)}, v2
    ds_read_b32 v{KT_}, v3
    ds_read_b128 {v(V0,4)}, v4
    ds_read_b128 {v(V1,4)}, v4 offset:608
    v_add_u32 v2, 1024, v2
    v_add_u32 v3, 128, v3
    v_add_u32 v4, 1216, v4
    s_waitcnt lgkmcnt(0)
    v_mfma_f32_32x32x16_bf16 {v(SA,16)}, {v(KM_,4)}, {v(QM_,4)}, 0
    v_mfma_f32_32x32x16_bf16 {v(SA,16)}, {v(KT_,4)}, {v(QT_,4)}, {v(SA,16)}
    s_nop 7
    s_nop 4
    v_max3_f32 v{T}, v{SA}, v{SA+1}, v{M}""")
    for i in range(2, 16, 2): k(f"v_max3_f32 v{T}, v{SA+i}, v{SA+i+1}, v{T}")
    k(f"""v_mov_b32 v{T+1}, v{T}
    s_nop 1
    v_permlane32_swap_b32 v{T}, v{T+1}
    v_max_f32 v{T}, v{T}, v{T+1}
    v_sub_f32 v{T+1}, v{M}, v{T}
    v_exp_f32 v{T+1}, v{T+1}
    v_mov_b32 v{M}, v{T}""")
    for i in range(16): k(f"v_sub_f32 v{SA+i}, v{SA+i}, v{T}")
    for i in range(16): k(f"v_mul_f32 v{O+i}, v{O+i}, v{T+1}")
    ex(SA, 0, 16)
    k("s_nop 0")
    cv(SA, 0, 8)
    k(f"""s_nop 1
    v_mfma_f32_32x32x16_bf16 {v(O,16)}, {v(V0,4)}, {v(P,4)}, {v(O,16)}
    v_mfma_f32_32x32x16_bf16 {v(O,16)}, {v(V1,4)}, {v(P+4,4)}, {v(O,16)}
    s_sub_u32 s52, s52, 1
    s_cmp_lg_u32 s52, 0
    s_cbranch_scc1 L_k2_sl
    s_nop 7
    s_nop 4
    s_branch L_k2_fin""")
    return dict(name="k2_kernel", text=k.text(), grid=256, block=512, lds=lds, vgpr=96)
```

```python
from gcore import *
from k4 import fbits, interleave

def div9(k, vq, vr, vin, vt):
    k(f"""v_mul_u32_u24 v{vq}, 7282, v{vin}
    v_lshrrev_b32 v{vq}, 16, v{vq}
    v_mul_u32_u24 v{vt}, 9, v{vq}
    v_sub_u32 v{vr}, v{vin}, v{vt}""")

def k36(which, diag=False, prio=1, NS=4, pro=3, lead=0, nown=2, win=8):
    nm = f"k{which}"
    k = Asm(nm)
    dg = Diag(k, diag, which)
    KD = D if which == 3 else FH
    nsteps = KD // 64
    rbs = KD * 32
    TB, WB = 0, NS*8192
    RED = NS*17408
    XL = RED + 20480
    lds = XL + 9216 + 1024
    dg.stamp()
    k(f"""s_cmp_ge_u32 s2, 256
    s_cbranch_scc1 L_{nm}_end
    s_load_dwordx2 s[6:7], s[0:1], {KA['ws']}
    s_load_dwordx2 s[4:5], s[0:1], {KA['x'] if which == 3 else KA['out']}
    v_lshrrev_b32 v2, 6, v0
    v_and_b32 v1, 63, v0
    v_readfirstlane_b32 s20, v2
    s_and_b32 s10, s2, 7
    s_lshr_b32 s11, s2, 3
    s_lshl_b32 s10, s10, 2
    s_lshr_b32 s12, s11, 3
    s_add_u32 s21, s10, s12
    s_and_b32 s22, s11, 7
    s_lshl_b32 s12, s12, 1
    s_add_u32 s23, s22, s12
    s_mul_i32 s23, s23, {win//8}
    s_cmp_ge_u32 s20, 4
    s_cbranch_scc0 L_{nm}_cons
    s_sub_u32 s19, s20, 4
    s_mul_i32 s10, s21, {4*rbs}
    s_mul_i32 s11, s22, {nsteps*9216}""")
    ld = Loader(k, [dict(mode='fb', n=8, srd=24, lds=TB, stride=8192, ptr=6, off=WS['O' if which == 3 else 'Y'], soff=10, size=4*rbs, pitch=rbs),
                    dict(mode='img', n=9, srd=28, lds=WB, stride=9216, ptr=6, off=WS['WOT' if which == 3 else 'WOUTT'], soff=11, size=nsteps*9216)],
                nsteps, NS, 19, pro=pro, lead=(lead, 23, nown, win) if lead else None)
    dl = Diag(k, diag, which); dl.i = 1
    ld.setup_v()
    k("s_waitcnt lgkmcnt(0)")
    ld.setup_srd()
    dl.stamp()
    def tail(i):
        if which == 3 and i == 0:
            srd(k, 24, 4, 0, S*D*2)
            k(f"""s_lshl_b32 s10, s21, 2
            s_add_u32 s10, s10, s19
            s_mul_i32 s10, s10, {16*1152}
            s_mul_i32 s11, s22, 144
            s_add_u32 s10, s10, s11
            s_mul_i32 s11, s19, 2304
            s_add_u32 s11, s11, {XL}""")
            for j in range(3):
                k(f"v_add_u32 v20, {64*j}, v1")
                div9(k, 21, 22, 20, 23)
                k(f"v_mul_u32_u24 v21, 1152, v21\nv_lshl_add_u32 v21, v22, 4, v21\ns_add_u32 m0, s11, {1024*j}")
                if j == 2: k("s_mov_b32 exec_lo, 0xffff\ns_mov_b32 exec_hi, 0")
                k("s_nop 0\nbuffer_load_dwordx4 v21, s[24:27], s10 offen lds")
            k("s_mov_b64 exec, -1")
            return 3
    ld.run(tail, dl if diag else None)
    k("s_waitcnt vmcnt(0)\ns_barrier")
    dl.stamp()
    dl.dump(6, 20, 16)
    k(f"s_endpgm\nL_{nm}_cons:")
    if prio: k(f"s_setprio {prio}")
    ACC, F0, F1, G, X = 16, 56, 84, 112, 132
    k(f"""s_and_b32 s16, s20, 1
    s_xor_b32 s12, s20, 1
    s_lshl_b32 s13, s16, 10
    v_lshlrev_b32 v6, 4, v1
    v_add_u32 v7, s13, v6
    s_lshl_b32 s14, s20, 11
    s_lshl_b32 s15, s12, 11
    v_add_u32 v2, s14, v7
    v_add_u32 v3, s15, v7
    v_add_u32 v4, {WB}, v7
    v_lshrrev_b32 v8, 4, v1          ; g
    v_and_b32 v9, 15, v1             ; n
    v_and_b32 v10, 7, v1
    v_lshlrev_b32 v10, 4, v10
    v_lshl_add_u32 v10, v8, 7, v10
    s_lshl_b32 s13, s16, 9
    s_add_u32 s13, s13, {WB+8192}
    v_add_u32 v5, s13, v10
    s_mul_i32 s14, s20, 5120
    s_mul_i32 s15, s12, 5120
    s_add_u32 s14, s14, {RED}
    s_add_u32 s15, s15, {RED}
    v_add_u32 v12, s14, v6
    v_add_u32 v13, s15, v6           ; partner's
    s_lshl_b32 s10, s21, 2
    s_add_u32 s17, s10, s20
    s_mul_i32 s44, s22, 288
    s_add_u32 s44, s44, {(2 if which == 3 else 5)*D*4}
    v_lshlrev_b32 v11, 4, v8
    s_mul_i32 s45, s17, 18432
    s_mul_i32 s10, s22, 2304
    s_add_u32 s45, s45, s10
    v_and_b32 v14, 1, v8
    v_lshrrev_b32 v15, 1, v8
    v_lshlrev_b32 v15, 8, v15
    v_lshl_add_u32 v15, v9, 4, v15
    s_waitcnt lgkmcnt(0)""")
    srd(k, 24, 6, WS['MOD'], 3456*4)
    srd(k, 28, 6, WS['X1'], S*D*2)
    for b in range(5): k(f"buffer_load_dwordx4 {v(G+4*b,4)}, v11, s[24:27], s44 offen offset:{64*b}")
    if which == 6:
        k("v_lshl_add_u32 v11, v14, 3, v15")
        for b in range(5): k(f"buffer_load_dwordx2 {v(X+2*b,2)}, v11, s[28:31], s45 offen offset:{512*b}")
    frags = [dict(r=(F0+4*j, F1+4*j), a=(2+j, None), imm=0) for j in range(2)]
    frags += [dict(r=(F0+8+4*b, F1+8+4*b), a=(4 if b < 4 else 5, None), imm=b*2048 if b < 4 else 0) for b in range(5)]
    acc = lambda b, tj: ACC + 20*tj + 4*b
    mf = [(acc(b, tj), 2+b, tj) for b in range(5) for tj in range(2)]
    dg.stamp()
    GemmLoop(k, frags, mf, nsteps, NS, 1, [(2, 0), (3, 0), (4, 1), (5, 1)], [8192, 9216], bar_pos=1).emit()
    dg.stamp()
    k("s_nop 7")
    for b in range(5): k(f"ds_write_b128 v12, {v(acc(b,1),4)} offset:{1024*b}")
    k("s_waitcnt lgkmcnt(0)\ns_barrier")
    for b in range(5): k(f"ds_read_b128 {v(F0+4*b,4)}, v13 offset:{1024*b}")
    k(f"s_mul_i32 s10, s20, 2304\ns_add_u32 s10, s10, {XL}\nv_mul_u32_u24 v10, 144, v9\nv_lshl_add_u32 v10, v8, 3, v10\nv_add_u32 v10, s10, v10")
    if which == 3:
        for b in range(5): k(f"ds_read_b64 {v(X+2*b,2)}, v10 offset:{32*b}")
    k("s_waitcnt vmcnt(0) lgkmcnt(0)")
    U, P = F1, 144
    def blk(b):
        a = acc(b, 0); u = U + 4*b
        return [f"v_pk_add_f32 {v(a,2)}, {v(a,2)}, {v(F0+4*b,2)}", f"v_pk_add_f32 {v(a+2,2)}, {v(a+2,2)}, {v(F0+4*b+2,2)}",
                f"v_lshlrev_b32 v{u}, 16, v{X+2*b}", f"v_and_b32 v{u+1}, 0xffff0000, v{X+2*b}",
                f"v_lshlrev_b32 v{u+2}, 16, v{X+2*b+1}", f"v_and_b32 v{u+3}, 0xffff0000, v{X+2*b+1}",
                f"v_pk_fma_f32 {v(a,2)}, {v(a,2)}, {v(G+4*b,2)}, {v(u,2)}", f"v_pk_fma_f32 {v(a+2,2)}, {v(a+2,2)}, {v(G+4*b+2,2)}, {v(u+2,2)}",
                f"v_cvt_pk_bf16_f32 v{P+2*b}, v{a}, v{a+1}", f"v_cvt_pk_bf16_f32 v{P+2*b+1}, v{a+2}, v{a+3}"]
    interleave(k, [blk(b) for b in range(5)])
    if which == 3:
        k(f"""v_lshl_add_u32 v11, v14, 9, v15
        v_permlane16_swap_b32 v{P}, v{P+2}
        v_permlane16_swap_b32 v{P+1}, v{P+3}
        v_permlane16_swap_b32 v{P+4}, v{P+6}
        v_permlane16_swap_b32 v{P+5}, v{P+7}
        buffer_store_dwordx4 {v(P,4)}, v11, s[28:31], s45 offen
        buffer_store_dwordx4 {v(P+4,4)}, v11, s[28:31], s45 offen offset:1024
        v_lshl_add_u32 v11, v14, 3, v15""")
        srd(k, 24, 6, WS['ST2'], 8*S*8)
        a = acc(0, 0)
        k(f"v_pk_add_f32 {v(U,2)}, {v(a,2)}, {v(a+2,2)}\nv_pk_mul_f32 {v(U+2,2)}, {v(a,2)}, {v(a,2)}\nv_pk_fma_f32 {v(U+2,2)}, {v(a+2,2)}, {v(a+2,2)}, {v(U+2,2)}")
        for b in range(1, 5):
            if b == 4: k(f"s_mov_b32 exec_hi, 0\nbuffer_store_dwordx2 {v(P+8,2)}, v11, s[28:31], s45 offen offset:2048")
            for h in range(2):
                a = acc(b, 0) + 2*h
                k(f"v_pk_add_f32 {v(U,2)}, {v(U,2)}, {v(a,2)}\nv_pk_fma_f32 {v(U+2,2)}, {v(a,2)}, {v(a,2)}, {v(U+2,2)}")
        k(f"""s_mov_b32 exec_hi, -1
        v_add_f32 v{U}, v{U}, v{U+1}
        v_add_f32 v{U+1}, v{U+2}, v{U+3}""")
        for op in ("v_permlane16_swap_b32", "v_permlane32_swap_b32"):
            k(f"v_mov_b32 v{U+2}, v{U}\nv_mov_b32 v{U+3}, v{U+1}\ns_nop 1\n{op} v{U}, v{U+2}\n{op} v{U+1}, v{U+3}\nv_pk_add_f32 {v(U,2)}, {v(U,2)}, {v(U+2,2)}")
        k(f"""s_lshl_b32 s10, s22, 14
        s_lshl_b32 s11, s17, 7
        s_add_u32 s10, s10, s11
        v_lshlrev_b32 v11, 3, v9
        s_mov_b32 exec_lo, 0xffff
        s_mov_b32 exec_hi, 0
        buffer_store_dwordx2 {v(U,2)}, v11, s[24:27], s10 offen
        s_mov_b64 exec, -1""")
    else:
        for b in range(4): k(f"ds_write_b64 v10, {v(P+2*b,2)} offset:{32*b}")
        k(f"s_mov_b32 exec_hi, 0\nds_write_b64 v10, {v(P+8,2)} offset:128\ns_mov_b32 exec_hi, -1")
        srd(k, 24, 4, 0, S*D*2)
        k(f"""v_add_u32 v12, s10, v6
        s_mul_i32 s10, s17, {16*1152}
        s_mul_i32 s11, s22, 144
        s_add_u32 s10, s10, s11
        s_waitcnt lgkmcnt(0)""")
        for j in range(3): k(f"ds_read_b128 {v(F0+4*j,4)}, v12 offset:{1024*j}")
        for j in range(3):
            k(f"v_add_u32 v20, {64*j}, v1")
            div9(k, 21, 22, 20, 23)
            k(f"v_mul_u32_u24 v21, 1152, v21\nv_lshl_add_u32 v{24+j}, v22, 4, v21")
        k("s_waitcnt lgkmcnt(0)")
        for j in range(3):
            if j == 2: k("s_mov_b32 exec_lo, 0xffff\ns_mov_b32 exec_hi, 0")
            k(f"buffer_store_dwordx4 {v(F0+4*j,4)}, v{24+j}, s[24:27], s10 offen")
        k("s_mov_b64 exec, -1")
    dg.stamp()
    if diag:
        k("s_waitcnt vmcnt(0)")
        dg.stamp()
        dg.dump(6, 20, 16)
    k(f"L_{nm}_end:\ns_endpgm")
    return dict(name=f"{nm}_kernel", text=k.text(), grid=256, block=512, lds=lds, vgpr=256 if DBG.get('steps') else 160)
```

```python
from gcore import *
import math, struct
def fbits(x): return struct.unpack('<I', struct.pack('<f', x))[0]
GC0 = -2.0*math.sqrt(2.0/math.pi)*math.log2(math.e)
GC1 = GC0*0.044715

def tile_ids(k):
    k(f"""s_and_b32 s10, s2, 7
    s_lshr_b32 s11, s2, 3
    s_and_b32 s12, s10, 1
    s_lshl_b32 s12, s12, 3
    s_and_b32 s13, s11, 7
    s_add_u32 s21, s12, s13
    s_lshr_b32 s12, s10, 1
    s_lshl_b32 s12, s12, 2
    s_lshr_b32 s14, s11, 3
    s_add_u32 s22, s12, s14
    s_lshl_b32 s14, s14, 1
    s_add_u32 s23, s13, s14""")

def interleave(k, lists):
    n = max(len(x) for x in lists)
    for i in range(n):
        for x in lists:
            if i < len(x): k(x[i])

def gelu_pair(a, t, C0, C1):
    return [f"v_pk_mul_f32 {v(t,2)}, {v(a,2)}, {v(a,2)}",
            f"v_pk_fma_f32 {v(t,2)}, {v(t,2)}, {v(C1,2)}, {v(C0,2)}",
            f"v_pk_mul_f32 {v(t,2)}, {v(t,2)}, {v(a,2)}",
            f"v_exp_f32 v{t}, v{t}", f"v_exp_f32 v{t+1}, v{t+1}",
            f"v_pk_add_f32 {v(t,2)}, {v(t,2)}, 1.0 op_sel_hi:[1,0]",
            f"v_rcp_f32 v{t}, v{t}", f"v_rcp_f32 v{t+1}, v{t+1}",
            f"v_pk_mul_f32 {v(a,2)}, {v(a,2)}, {v(t,2)}"]

def bsel(r):
    return (r & ~1, r & 1)

def k4(name="k4_kernel", diag=False, prio=1, slot=4):
    k = Asm("k4")
    dg = Diag(k, diag, slot)
    NS = 3
    TB, WB = 0, 3*16384
    RS, V2L = 159744, 159744 + 512
    PS, AB = 0, 4096
    dg.stamp()
    k(f"""s_cmp_ge_u32 s2, 256
    s_cbranch_scc1 L_k4_end
    s_load_dwordx2 s[6:7], s[0:1], {KA['ws']}
    v_lshrrev_b32 v2, 6, v0
    v_and_b32 v1, 63, v0
    v_readfirstlane_b32 s20, v2""")
    tile_ids(k)
    k(f"""s_cmp_ge_u32 s20, 4
    s_cbranch_scc0 L_k4_cons
    s_sub_u32 s19, s20, 4
    s_mul_i32 s10, s21, {8*18432}
    s_mul_i32 s11, s22, {9*36864}""")
    ld = Loader(k, [dict(mode='fb', n=16, srd=24, lds=TB, stride=16384, ptr=6, off=WS['X1'], soff=10, size=8*18432, pitch=18432),
                    dict(mode='img', n=36, srd=28, lds=WB, stride=36864, ptr=6, off=WS['W2'], soff=11, size=9*36864)],
                9, NS, 19)
    dl = Diag(k, diag, slot); dl.i = 1
    ld.setup_v()
    k("s_mul_i32 s12, s22, 1152\ns_waitcnt lgkmcnt(0)")
    ld.setup_srd()
    srd(k, 32, 6, WS['V2'], F*4)
    k(f"""s_cmp_lt_u32 s19, 2
    s_cbranch_scc0 L_k4_nov
    s_lshl_b32 s13, s19, 10
    s_add_u32 s12, s12, s13
    s_add_u32 m0, s13, {V2L}
    v_lshlrev_b32 v20, 4, v1
    buffer_load_dwordx4 v20, s[32:35], s12 offen lds
    L_k4_nov:""")
    dl.stamp()
    ld.run(None, dl if diag else None)
    srd(k, 24, 6, WS['XCH'], 16*16*128*8)
    k(f"""s_lshl_b32 s10, s19, 7            ; 32 tokens * 4 B
    v_and_b32 v2, 31, v1
    v_lshl_add_u32 v2, v2, 2, s10
    s_lshl_b32 s11, s21, 14
    s_lshl_b32 s12, s19, 8
    s_add_u32 s11, s11, s12           ; + 32 tokens * 8 B
    s_lshl_b32 s12, s22, 10
    s_add_u32 s12, s12, s11
    v_and_b32 v3, 31, v1
    v_lshlrev_b32 v3, 3, v3
    v_and_b32 v4, 15, v1
    v_lshrrev_b32 v5, 4, v1
    v_lshlrev_b32 v5, 12, v5
    v_lshl_add_u32 v5, v4, 4, v5
    v_lshl_add_u32 v4, v4, 3, s10
    s_mov_b32 s13, 0x100000
    s_barrier
    ds_read_b32 v6, v2 offset:{PS}
    ds_read_b32 v7, v2 offset:{PS+512}
    ds_read_b32 v8, v2 offset:{PS+1024}
    ds_read_b32 v9, v2 offset:{PS+1536}
    s_waitcnt lgkmcnt(0)
    v_add_f32 v6, v6, v8
    v_add_f32 v7, v7, v9
    v_max_f32 v7, 0, v7
    s_mov_b32 exec_hi, 0
    buffer_store_dwordx2 v[6:7], v3, s[24:27], s12 offen sc1
    s_mov_b32 exec_hi, -1""")
    dl.stamp()
    k(f"""L_k4_poll:
    buffer_load_dwordx4 v[8:11], v5, s[24:27], s11 offen sc1
    buffer_load_dwordx4 v[12:15], v5, s[24:27], s11 offen offset:1024 sc1
    buffer_load_dwordx4 v[16:19], v5, s[24:27], s11 offen offset:2048 sc1
    buffer_load_dwordx4 v[20:23], v5, s[24:27], s11 offen offset:3072 sc1
    s_sub_u32 s13, s13, 1
    s_waitcnt vmcnt(0)
    v_min3_i32 v24, v9, v11, v13
    v_min3_i32 v25, v15, v17, v19
    v_min3_i32 v24, v24, v21, v23
    v_min_i32 v24, v24, v25
    v_cmp_gt_i32 vcc, 0, v24
    s_cmp_eq_u32 s13, 0
    s_cbranch_scc1 L_k4_pend
    s_nop 2
    s_cbranch_vccnz L_k4_poll
    L_k4_pend:
    v_pk_add_f32 v[8:9], v[8:9], v[12:13]
    v_pk_add_f32 v[10:11], v[10:11], v[14:15]
    v_pk_add_f32 v[16:17], v[16:17], v[20:21]
    v_pk_add_f32 v[18:19], v[18:19], v[22:23]
    v_pk_add_f32 v[8:9], v[8:9], v[16:17]
    v_pk_add_f32 v[10:11], v[10:11], v[18:19]""")
    for op in ("v_permlane16_swap_b32", "v_permlane32_swap_b32"):
        for i in range(4): k(f"v_mov_b32 v{12+i}, v{8+i}")
        k("s_nop 0")
        for i in range(4): k(f"{op} v{8+i}, v{12+i}")
        k("v_pk_add_f32 v[8:9], v[8:9], v[12:13]\nv_pk_add_f32 v[10:11], v[10:11], v[14:15]")
    k(f"""s_mov_b32 s14, {fbits(1.0/FH)}
    v_mov_b32 v16, {fbits(1e-5)}
    v_mul_f32 v8, s14, v8
    v_mul_f32 v10, s14, v10
    v_fma_f32 v9, v9, s14, v16
    v_fma_f32 v11, v11, s14, v16
    v_fma_f32 v9, -v8, v8, v9
    v_fma_f32 v11, -v10, v10, v11
    v_rsq_f32 v12, v9
    v_rsq_f32 v13, v11
    s_nop 0
    v_mul_f32 v14, -v8, v12
    v_mul_f32 v15, -v10, v13
    ds_write_b64 v4, v[12:13] offset:{AB}
    ds_write_b64 v4, v[14:15] offset:{AB+512}
    s_waitcnt lgkmcnt(0)
    s_barrier""")
    dl.stamp()
    dl.dump(6, 20, 16)
    k("s_endpgm\nL_k4_cons:")
    if prio: k(f"s_setprio {prio}")
    ACC, W, T0, T1 = 16, 160, 200, 216
    k(f"""s_and_b32 s16, s20, 1            ; wn
    s_xor_b32 s12, s20, 1
    s_lshl_b32 s13, s20, 12
    s_lshl_b32 s14, s12, 12
    s_mul_i32 s15, s16, {5*2048}
    s_add_u32 s15, s15, {WB}
    v_lshlrev_b32 v6, 4, v1
    v_add_u32 v2, s13, v6
    v_add_u32 v3, s14, v6
    v_add_u32 v4, s15, v6
    v_add_u32 v5, {WB+4*2048}, v6
    s_lshl_b32 s10, s21, 10
    s_lshl_b32 s11, s20, 8
    s_add_u32 s10, s10, s11
    v_and_b32 v7, 31, v1
    v_lshrrev_b32 v8, 5, v1
    v_lshlrev_b32 v8, 16, v8
    v_lshl_add_u32 v8, v7, 3, v8
    s_lshl_b32 s11, s20, 7
    v_lshl_add_u32 v7, v7, 2, s11
    v_add_u32 v7, {RS}, v7
    s_waitcnt lgkmcnt(0)""")
    srd(k, 24, 6, WS['ST2'], 8*S*8)
    for p in range(4):
        k(f"buffer_load_dwordx2 {v(16+2*p,2)}, v8, s[24:27], s10 offen\ns_add_u32 s10, s10, {S*8}")
    srd(k, 28, 6, WS['Z1'], S*FH*2)
    srd(k, 32, 6, WS['Z2T'], S*FH*2)
    k(f"""s_lshl_b32 s10, s21, 2
    s_add_u32 s11, s20, s10
    s_add_u32 s17, s12, s10
    s_mul_i32 s13, s22, 9
    s_mul_i32 s14, s16, 5
    s_add_u32 s14, s14, s13
    s_mul_i32 s44, s11, 144
    s_add_u32 s46, s44, s13
    s_add_u32 s46, s46, 4
    s_lshl_b32 s46, s46, 10          ; z1 middle
    s_add_u32 s44, s44, s14
    s_lshl_b32 s44, s44, 10          ; z1 pair A
    s_mul_i32 s45, s17, 144
    s_add_u32 s45, s45, s14
    s_lshl_b32 s45, s45, 10          ; z1 pair B
    s_lshl_b32 s47, s14, 16
    s_lshl_b32 s10, s11, 10
    s_add_u32 s48, s47, s10
    s_add_u32 s15, s13, 4
    s_lshl_b32 s15, s15, 16
    s_add_u32 s50, s15, s10          ; z2t middle
    s_lshl_b32 s10, s17, 10
    s_add_u32 s49, s47, s10          ; z2t pair B
    s_lshl_b32 s51, s20, 7
    s_lshl_b32 s52, s12, 7
    s_mul_i32 s53, s16, {80*4}
    s_mov_b32 s14, {fbits(1.0/D)}
    v_mov_b32 v9, {fbits(1e-5)}
    s_waitcnt vmcnt(0)
    v_pk_add_f32 v[16:17], v[16:17], v[18:19]
    v_pk_add_f32 v[20:21], v[20:21], v[22:23]
    v_pk_add_f32 v[16:17], v[16:17], v[20:21]
    v_mov_b32 v18, v16
    v_mov_b32 v19, v17
    s_nop 1
    v_permlane32_swap_b32 v16, v18
    v_permlane32_swap_b32 v17, v19
    v_pk_add_f32 v[16:17], v[16:17], v[18:19]
    v_mul_f32 v16, s14, v16
    v_fma_f32 v17, v17, s14, v9
    v_fma_f32 v17, -v16, v16, v17
    v_rsq_f32 v17, v17
    s_nop 0
    ds_write_b32 v7, v17""")
    frags = []
    for j in range(4): frags.append(dict(r=(T0+4*j, T1+4*j), a=(2 if j < 2 else 3, None), imm=(j & 1)*2048))
    for i in range(10):
        h, fi = divmod(i, 5)
        frags.append(dict(r=(W+4*i, W+4*i), a=(4 if fi < 4 else 5, None), imm=h*18432 + (fi*2048 if fi < 4 else 0)))
    acc = lambda h, fi, tj: ACC + 72*h + 4*(fi*4+tj)
    mf = []
    for h in range(2):
        for fi in range(5):
            for tj in range(4 if fi < 4 else 2):
                mf.append((acc(h, fi, tj), tj, 4+5*h+fi) if h == 0 else (acc(h, fi, tj), 4+5*h+fi, tj))
    dg.stamp()
    GemmLoop(k, frags, mf, 9, NS, 2, [(2, 0), (3, 0), (4, 1), (5, 1)], [16384, 36864], bar_pos=8).emit()
    dg.stamp()
    R2, VZ, C0, C1, S1, S2, TT = 160, 176, 182, 184, 186, 202, 218
    k(f"""v_lshrrev_b32 v6, 4, v1
    v_and_b32 v7, 15, v1
    v_lshlrev_b32 v8, 4, v6           ; 16*g
    v_add_u32 v9, s52, v8
    v_add_u32 v8, s51, v8
    v_lshlrev_b32 v10, 2, v7          ; 4*n
    v_add_u32 v11, s53, v10
    v_add_u32 v12, {RS}, v8
    v_add_u32 v13, {RS}, v9
    v_add_u32 v14, {V2L}, v11
    v_add_u32 v15, {V2L}, v10""")
    for tj in range(4): k(f"ds_read_b128 {v(R2+4*tj,4)}, v{12 if tj < 2 else 13} offset:{(tj&1)*64}")
    for fi in range(4): k(f"ds_read_b32 v{VZ+fi}, v14 offset:{fi*64}")
    k(f"ds_read_b32 v{VZ+4}, v15 offset:256")
    k(f"v_mov_b32 v{C0}, {fbits(GC0)}\nv_mov_b32 v{C0+1}, v{C0}\nv_mov_b32 v{C1}, {fbits(GC1)}\nv_mov_b32 v{C1+1}, v{C1}\ns_waitcnt lgkmcnt(0)")
    def z2blk(fi, tj, t):
        out = []
        b, odd = bsel(VZ+fi)
        sel = "op_sel:[0,0,1] op_sel_hi:[1,1,1]" if odd else "op_sel_hi:[1,1,0]"
        for h in range(2):
            a = acc(0, fi, tj) + 2*h
            l = [f"v_pk_fma_f32 {v(a,2)}, {v(a,2)}, {v(R2+4*tj+2*h,2)}, {v(b,2)} {sel}"] + gelu_pair(a, t+2*h, C0, C1)
            s1, s2 = S1+4*tj+2*h, S2+4*tj+2*h
            if fi == 0:
                l += [f"v_pk_mul_f32 {v(s2,2)}, {v(a,2)}, {v(a,2)}"]
            elif fi == 1:
                a0 = acc(0, 0, tj) + 2*h
                l += [f"v_pk_add_f32 {v(s1,2)}, {v(a0,2)}, {v(a,2)}", f"v_pk_fma_f32 {v(s2,2)}, {v(a,2)}, {v(a,2)}, {v(s2,2)}"]
            else:
                l += [f"v_pk_add_f32 {v(s1,2)}, {v(s1,2)}, {v(a,2)}", f"v_pk_fma_f32 {v(s2,2)}, {v(a,2)}, {v(a,2)}, {v(s2,2)}"]
            out.append(l)
        return out
    for fi in range(5):
        for tp in range(2 if fi < 4 else 1):
            interleave(k, z2blk(fi, 2*tp, TT) + z2blk(fi, 2*tp+1, TT+4))
    for q in range(16): k(f"v_add_f32_dpp v{S1+q}, v{S1+q}, v{S1+q} row_ror:8 row_mask:0xf bank_mask:0x3")
    for q in range(16): k(f"v_add_f32_dpp v{S1+q}, v{S2+q}, v{S2+q} row_ror:8 row_mask:0xf bank_mask:0xc")
    for p in range(2):
        for i in range(4): k(f"v_add_f32_dpp v{S1+8*p+i}, v{S1+8*p+i}, v{S1+8*p+i} row_half_mirror row_mask:0xf bank_mask:0x5")
    for p in range(2):
        for i in range(4): k(f"v_add_f32_dpp v{S1+8*p+i}, v{S1+8*p+4+i}, v{S1+8*p+4+i} row_half_mirror row_mask:0xf bank_mask:0xa")
    for qp in ("[1,0,3,2]", "[2,3,0,1]"):
        for p in range(2):
            for i in range(4): k(f"v_add_f32_dpp v{S1+8*p+i}, v{S1+8*p+i}, v{S1+8*p+i} quad_perm:{qp} row_mask:0xf bank_mask:0xf")
    k(f"""v_lshrrev_b32 v{S2}, 3, v7
    v_lshlrev_b32 v{S2}, 9, v{S2}          ; stat * 512
    v_bfe_u32 v{S2+1}, v7, 2, 1
    v_lshl_add_u32 v{S2}, v{S2+1}, 6, v{S2}   ; + (bank&1) * 64
    s_lshl_b32 s10, s16, 10
    v_add_u32 v{S2}, s10, v{S2}
    v_add_u32 v{S2+1}, v{S2}, v9
    v_add_u32 v{S2}, v{S2}, v8
    s_mov_b32 exec_lo, 0x11111111
    s_mov_b32 exec_hi, 0x11111111
    ds_write_b128 v{S2}, {v(S1,4)} offset:{PS}
    ds_write_b128 v{S2+1}, {v(S1+8,4)} offset:{PS}
    s_mov_b64 exec, -1
    v_add_u32 v12, s51, v10
    v_add_u32 v13, s52, v10
    v_add_u32 v12, {RS}, v12
    v_add_u32 v13, {RS}, v13
    v_lshlrev_b32 v15, 4, v6
    v_add_u32 v15, {V2L+576}, v15
    v_add_u32 v14, s53, v15""")
    R1, V1 = 160, 186
    for tj in range(4): k(f"ds_read_b32 v{R1+tj}, v{12 if tj < 2 else 13} offset:{(tj&1)*64}")
    k("s_waitcnt lgkmcnt(4)\ns_barrier")
    for fi in range(4): k(f"ds_read_b128 {v(V1+4*fi,4)}, v14 offset:{fi*64}")
    k(f"ds_read_b128 {v(V1+16,4)}, v15 offset:256")
    k(f"v_lshlrev_b32 v2, 4, v1\ns_waitcnt lgkmcnt(0)")
    dg.stamp()
    def z1blk(fi, tj, t, d):
        out = []
        b, odd = bsel(R1+tj)
        sel = "op_sel:[0,1,0] op_sel_hi:[1,1,1]" if odd else "op_sel_hi:[1,0,1]"
        for h in range(2):
            a = acc(1, fi, tj) + 2*h
            out.append([f"v_pk_fma_f32 {v(a,2)}, {v(a,2)}, {v(b,2)}, {v(V1+4*fi+2*h,2)} {sel}"] + gelu_pair(a, t+2*h, C0, C1)
                       + [f"v_cvt_pk_bf16_f32 v{d+h}, v{a}, v{a+1}"])
        return out
    pi = 0
    for fi in range(5):
        for tp in range(2 if fi < 4 else 1):
            d = 226 + 4*(pi % 3); pi += 1
            interleave(k, z1blk(fi, 2*tp, TT, d) + z1blk(fi, 2*tp+1, TT+4, d+2))
            if fi < 4: k(f"buffer_store_dwordx4 {v(d,4)}, v2, s[28:31], s{44+tp} offen offset:{fi*1024}")
            else: k(f"buffer_store_dwordx4 {v(d,4)}, v2, s[28:31], s46 offen")
    dg.stamp()
    A_, B_ = 160, 176
    k(f"""v_and_b32 v3, 1, v6
    v_lshrrev_b32 v4, 1, v6
    v_lshlrev_b32 v4, 8, v4
    v_lshl_add_u32 v4, v3, 9, v4
    v_lshl_add_u32 v4, v7, 4, v4
    s_barrier""")
    for tj in range(4):
        k(f"ds_read_b128 {v(A_+4*tj,4)}, v{8 if tj < 2 else 9} offset:{AB+(tj&1)*64}")
        k(f"ds_read_b128 {v(B_+4*tj,4)}, v{8 if tj < 2 else 9} offset:{AB+512+(tj&1)*64}")
    k("s_waitcnt lgkmcnt(0)")
    dg.stamp()
    pi = 0
    for fi in range(5):
        for tp in range(2 if fi < 4 else 1):
            d = 192 + 4*pi; pi += 1
            for tj in (2*tp, 2*tp+1):
                for h in range(2):
                    a = acc(0, fi, tj) + 2*h
                    k(f"v_pk_fma_f32 {v(a,2)}, {v(a,2)}, {v(A_+4*tj+2*h,2)}, {v(B_+4*tj+2*h,2)}")
            for tj in (2*tp, 2*tp+1):
                for h in range(2):
                    a = acc(0, fi, tj) + 2*h
                    k(f"v_cvt_pk_bf16_f32 v{d+2*(tj&1)+h}, v{a}, v{a+1}")
            k(f"s_nop 1\nv_permlane16_swap_b32 v{d}, v{d+2}\nv_permlane16_swap_b32 v{d+1}, v{d+3}")
            if fi < 4:
                k(f"buffer_store_dwordx4 {v(d,4)}, v4, s[32:35], s{48+tp} offen")
                if tp == 1: k("s_add_u32 s48, s48, 65536\ns_add_u32 s49, s49, 65536")
            else: k(f"buffer_store_dwordx4 {v(d,4)}, v4, s[32:35], s50 offen")
    if diag:
        k("s_waitcnt vmcnt(0)")
        dg.stamp()
        dg.dump(6, 20, 16)
    k("L_k4_end:\ns_endpgm")
    return dict(name=name, text=k.text(), grid=256, block=512, lds=163840, vgpr=256)
```

```python
from gcore import *

def k5(name="k5_kernel", diag=False, NS=4, lead=4, prio=1, slot=5, pro=None):
    k = Asm("k5")
    dg = Diag(k, diag, slot)
    TB, FB = 0, NS*16384
    dg.stamp()
    k(f"""s_cmp_ge_u32 s2, 256
    s_cbranch_scc1 L_k5_end
    s_load_dwordx2 s[4:5], s[0:1], {KA['w_sp']}
    s_load_dwordx2 s[6:7], s[0:1], {KA['ws']}
    s_load_dwordx2 s[8:9], s[0:1], {KA['b_sp']}
    v_lshrrev_b32 v2, 6, v0
    v_and_b32 v1, 63, v0
    v_readfirstlane_b32 s20, v2
    s_and_b32 s10, s2, 7
    s_lshr_b32 s11, s2, 3
    s_and_b32 s12, s10, 1
    s_lshl_b32 s12, s12, 3
    s_and_b32 s13, s11, 7
    s_add_u32 s21, s12, s13          ; t tile 0..15
    s_lshr_b32 s12, s10, 1
    s_lshl_b32 s12, s12, 2
    s_lshr_b32 s14, s11, 3
    s_add_u32 s22, s12, s14          ; f tile 0..15
    s_lshl_b32 s14, s14, 1
    s_add_u32 s23, s13, s14
    s_cmp_ge_u32 s20, 4
    s_cbranch_scc0 L_k5_cons
    s_sub_u32 s19, s20, 4
    s_mul_i32 s10, s21, {128*4096}
    s_mul_i32 s11, s22, {9*65536}
    """)
    ZB = 0
    pro = pro or NS - 1
    ld = Loader(k, [dict(mode='row', n=16, srd=24, lds=TB, stride=16384, ptr=4, soff=10, size=128*4096, pitch=4096),
                    dict(mode='fb', n=18, srd=28, lds=FB, stride=18432, ptr=6, off=WS['Z2T'], soff=11, size=9*65536, pitch=65536)],
                32, NS, 19, lead=(lead, 23, 2, 8) if lead else None, pro=pro)
    if NS == 4:
        ZL, BL, ti, lds = FB, TB, pro - 2, NS*34816
    else:
        ZL, BL, ti, lds = NS*34816, NS*34816 + 36864, 0, NS*34816 + 36864 + 1024
    dl = Diag(k, diag, slot); dl.i = 1
    ld.setup_v()
    dl.stamp()
    k("s_waitcnt lgkmcnt(0)")
    ld.setup_srd()
    dl.stamp()
    def tail(i):
        if i == ti:
            srd(k, 24, 6, WS['Z1'], S*FH*2)
            srd(k, 28, 8, 0, S*2)
            k(f"""s_and_b32 s16, s19, 1
            s_lshl_b32 s10, s21, 2
            s_add_u32 s11, s10, s19
            s_xor_b32 s12, s11, 1
            s_mul_i32 s13, s22, 9
            s_mul_i32 s14, s16, 5
            s_add_u32 s14, s14, s13
            s_mul_i32 s30, s11, 144
            s_add_u32 s32, s30, s13
            s_add_u32 s32, s32, 4
            s_lshl_b32 s32, s32, 10
            s_add_u32 s33, s30, s14
            s_lshl_b32 s33, s33, 10
            s_mul_i32 s34, s12, 144
            s_add_u32 s34, s34, s14
            s_lshl_b32 s34, s34, 10
            s_mov_b32 s30, {S*2}
            s_mul_i32 s35, s19, 9216
            s_add_u32 s35, s35, {ZL}
            v_lshlrev_b32 v2, 4, v1
            v_lshlrev_b32 v3, 2, v1
            s_mov_b32 m0, s35
            s_lshl_b32 s10, s21, 8""")
            for fi in range(4):
                k(f"buffer_load_dwordx4 v2, s[24:27], s33 offen offset:{fi*1024} lds")
            k("s_add_u32 m0, s35, 4096\ns_nop 0")
            for fi in range(4):
                k(f"buffer_load_dwordx4 v2, s[24:27], s34 offen offset:{fi*1024} lds")
            k("s_add_u32 m0, s35, 8192\ns_nop 0\nbuffer_load_dwordx4 v2, s[24:27], s32 offen lds")
            k(f"s_lshl_b32 s11, s19, 8\ns_add_u32 m0, s11, {BL}\ns_nop 0\nbuffer_load_dword v3, s[28:31], s10 offen lds")
            return 10
    ld.run(tail, dl if diag else None)
    k("s_waitcnt vmcnt(0)\ns_barrier")
    dl.stamp()
    dl.dump(6, 20, 16)
    k("s_endpgm\nL_k5_cons:")
    if prio: k(f"s_setprio {prio}")
    ACC, SA, SB, Z, BS = 16, 88, 124, 160, 196
    k(f"""s_and_b32 s16, s20, 1            ; wf
    s_lshr_b32 s17, s20, 1           ; wt
    s_lshl_b32 s10, s17, 1
    s_add_u32 s11, s10, s16
    s_xor_b32 s12, s11, 1
    s_lshl_b32 s13, s11, 12
    s_lshl_b32 s14, s12, 12
    s_mul_i32 s15, s16, {5*2048}
    s_add_u32 s15, s15, {FB}""")
    frag_addr(k, 8, 9, 10)
    k(f"""v_add_u32 v2, s13, v8
    v_add_u32 v3, s13, v9
    v_add_u32 v4, s14, v8
    v_add_u32 v5, s14, v9
    v_lshlrev_b32 v8, 4, v1
    v_add_u32 v6, s15, v8
    v_add_u32 v8, {FB+4*2048}, v8""")
    for i in range(72): k(f"v_mov_b32 v{ACC+i}, 0")
    for i in range(36): k(f"v_mov_b32 v{SB+i}, 0")
    k(f"""s_waitcnt lgkmcnt(0)
    s_lshl_b32 s10, s21, 2
    s_lshl_b32 s43, s11, 6
    s_lshl_b32 s44, s12, 6
    s_add_u32 s11, s11, s10
    s_add_u32 s12, s12, s10
    s_mul_i32 s13, s22, 9
    s_mul_i32 s14, s16, 5
    s_add_u32 s14, s14, s13
    s_mul_i32 s45, s11, {2*73728}
    s_mul_i32 s47, s12, {2*73728}    ; T2
    s_lshl_b32 s10, s13, 9
    s_add_u32 s49, s45, s10
    s_add_u32 s49, s49, {4*512}
    s_lshl_b32 s10, s14, 9
    s_add_u32 s45, s45, s10
    s_add_u32 s47, s47, s10
    s_add_u32 s46, s45, 73728
    s_add_u32 s48, s47, 73728
    s_mul_i32 s40, s20, 9216
    s_add_u32 s40, s40, {ZL}
    s_lshl_b32 s41, s20, 8
    s_add_u32 s41, s41, {BL}""")
    srd(k, 32, 6, WS['Y'], S*FH*2)
    k(f"""v_lshlrev_b32 v200, 4, v1
    v_add_u32 v200, s40, v200
    v_and_b32 v10, 15, v1
    v_lshl_add_u32 v201, v10, 1, s41
    v_add_u32 v204, s44, v201
    v_add_u32 v201, s43, v201
    v_lshrrev_b32 v11, 4, v1
    v_and_b32 v12, 1, v11
    v_lshrrev_b32 v11, 1, v11
    v_lshlrev_b32 v11, 8, v11
    v_lshl_add_u32 v13, v10, 4, v11
    v_lshl_add_u32 v202, v12, 9, v13
    v_mul_u32_u24 v12, 73728, v12
    v_add_u32 v203, v12, v13""")
    reads = [(2, 3, 0, 16384), (6, None, 0, 18432), (2, 3, 2048, 16384), (6, None, 2048, 18432), (4, 5, 0, 16384), (6, None, 4096, 18432),
             (4, 5, 2048, 16384), (6, None, 6144, 18432), (8, None, 0, 18432)]
    T = [0, 2, 4, 6]; Fr = [1, 3, 5, 7]; M = 8
    acc = lambda fi, tj: ACC + 4*(fi*4+tj)
    order = [(0,0),(0,1),(1,0),(1,1),(0,2),(1,2),(2,0),(2,1),(2,2),(0,3),(1,3),(2,3),(3,0),(3,1),(3,2),(3,3)]
    mf = [(acc(fi, tj), Fr[fi], T[tj]) for fi, tj in order] + [(acc(4, 0), M, T[0]), (acc(4, 1), M, T[1])]
    dg.stamp()
    consumer_loop(k, reads, mf, 32, NS, SA, SB)
    dg.stamp()
    k("s_barrier")
    for tj in range(4):
        k(f"ds_read_u16 v{BS+tj}, v{201 if tj < 2 else 204} offset:{(tj&1)*32}")
    for p in range(2):
        for fi in range(4):
            k(f"ds_read_b128 {v(Z+4*(fi*2+p),4)}, v200 offset:{p*4096+fi*1024}")
    k(f"ds_read_b128 {v(Z+32,4)}, v200 offset:8192")
    k("s_waitcnt lgkmcnt(9)")
    for tj in range(4): k(f"v_lshlrev_b32 v{BS+tj}, 16, v{BS+tj}")
    k("s_waitcnt lgkmcnt(0)")
    P = SA
    U = SB
    def block(fi, tj, dst, U):
        a = acc(fi, tj)
        z = Z + 4*(fi*2 + tj//2) + 2*(tj & 1) if fi < 4 else Z + 32 + 2*tj
        b = BS + (tj & ~1)
        sel = "op_sel:[0,1] op_sel_hi:[1,1]" if tj & 1 else "op_sel_hi:[1,0]"
        return f"""v_pk_add_f32 {v(a,2)}, {v(a,2)}, {v(b,2)} {sel}
        v_pk_add_f32 {v(a+2,2)}, {v(a+2,2)}, {v(b,2)} {sel}
        v_lshlrev_b32 v{U}, 16, v{z}
        v_and_b32 v{U+1}, 0xffff0000, v{z}
        v_lshlrev_b32 v{U+2}, 16, v{z+1}
        v_and_b32 v{U+3}, 0xffff0000, v{z+1}
        v_pk_mul_f32 {v(a,2)}, {v(a,2)}, {v(U,2)}
        v_pk_mul_f32 {v(a+2,2)}, {v(a+2,2)}, {v(U+2,2)}
        v_cvt_pk_bf16_f32 v{dst}, v{a}, v{a+1}
        v_cvt_pk_bf16_f32 v{dst+1}, v{a+2}, v{a+3}""".split("\n")
    def two(x, y):
        for p, q in zip(x, y): k(p); k(q)
    pi = 0
    for tj in range(4):
        for fp in range(2):
            d = P + 4*pi; pi += 1
            two(block(2*fp, tj, d, U), block(2*fp+1, tj, d+2, U+4))
            k(f"s_nop 1\nv_permlane16_swap_b32 v{d}, v{d+2}\nv_permlane16_swap_b32 v{d+1}, v{d+3}")
            k(f"buffer_store_dwordx4 {v(d,4)}, v202, s[32:35], s{45+tj} offen offset:{fp*1024}")
    d = P + 4*pi
    two(block(4, 0, d, U), block(4, 1, d+2, U+4))
    k(f"s_nop 1\nv_permlane16_swap_b32 v{d}, v{d+2}\nv_permlane16_swap_b32 v{d+1}, v{d+3}")
    k(f"buffer_store_dwordx4 {v(d,4)}, v203, s[32:35], s49 offen")
    dg.stamp()
    if diag:
        k("s_waitcnt vmcnt(0)")
        dg.stamp()
        dg.dump(6, 20, 16)
    k("L_k5_end:\ns_endpgm")
    return dict(name=name, text=k.text(), grid=256, block=512, lds=lds, vgpr=208)
```

```python
import sys
from gcore import *
from k0 import k0a, k0b
from k1 import k1
from k2 import k2
from k36 import k36
from k4 import k4
from k5 import k5
BANNER = open('adaLN_cond__softmax_full_mha__mixer_gmlp__prompt.s.ref').read().split('; Override launch')[0]
def kernels(diag=False):
    return [k0a(diag), k0b(diag), k1(diag), k2(diag), k36(3, diag), k4(diag=diag), k5(diag=diag), k36(6, diag, NS=6, pro=4, lead=4)]
def text(diag=False): return assemble_file(kernels(diag), BANNER)
if __name__ == "__main__":
    out = sys.argv[1] if len(sys.argv) > 1 else 'adaLN_cond__softmax_full_mha__mixer_gmlp__prompt.s'
    open(out, 'w').write(text())
    print("written", out)
```
